```python
import torch

def _softmax(x, axis=-1):
    return torch.softmax(x, dim=axis)
def _gelu(x):
    return torch.nn.functional.gelu(x, approximate="tanh")
def _silu(x):
    return torch.nn.functional.silu(x)
def _sigmoid(x):
    return torch.sigmoid(x)
def _layernorm(x, axis=-1, eps=1e-5):
    m = x.mean(dim=axis, keepdim=True)
    v = x.var(dim=axis, keepdim=True, unbiased=False)
    return (x - m) / torch.sqrt(v + eps)
def _scatter_add(tgt, idx, src, axis=0):
    return tgt.clone().index_add_(axis, idx, src)
def _segment_sum(src, seg, n):
    out = torch.zeros((n,) + src.shape[1:], dtype=src.dtype)
    return out.index_add_(0, seg, src)
def _pad(x, pw):
    flat = tuple(v for pair in reversed(pw) for v in pair)
    return torch.nn.functional.pad(x, flat)

kernel_name = 'concat_heads__gqa_block_cached__mha_block_cached__near_ridge'

def setup_inputs():

    _w = (lambda a: (lambda t: t.to(torch.bfloat16) if t.is_floating_point() else t)(torch.as_tensor(a)))
    def _A_setup():
        B, Sq, D = 8, 288, 640
        Hq, Hkv, Sk, Dh = 32, 32, 1024, 128
        assert Hq % Hkv == 0, (Hq, Hkv)
        return {
            "x": _w((lambda *s: torch.randn(*s, dtype=torch.bfloat16) * 0.8)(B, Sq, D)),
            "k_cache": _w((lambda *s: torch.randn(*s, dtype=torch.bfloat16) * 0.8)(B, Hkv, Sk, Dh)),
            "v_cache": _w((lambda *s: torch.randn(*s, dtype=torch.bfloat16) * 0.05)(B, Hkv, Sk, Dh)),
            "wq": _w((lambda *s: torch.randn(*s, dtype=torch.bfloat16) * 0.8)(D, Hq * Dh) * (D ** -0.5)),
            "wo": _w((lambda *s: torch.randn(*s, dtype=torch.bfloat16) * 0.05)(Hq * Dh, D) * ((Hq * Dh) ** -0.5)),
        }
    _A_in = _A_setup()

    def _B_setup():
        B, Sq, D = 8, 288, 640
        H, Sk, Dh = 32, 1024, 128
        return {
            "x": _w((lambda *s: torch.randn(*s, dtype=torch.bfloat16) * 0.8)(B, Sq, D)),
            "k_cache": _w((lambda *s: torch.randn(*s, dtype=torch.bfloat16) * 0.8)(B, H, Sk, Dh)),
            "v_cache": _w((lambda *s: torch.randn(*s, dtype=torch.bfloat16) * 0.05)(B, H, Sk, Dh)),
            "wq": _w((lambda *s: torch.randn(*s, dtype=torch.bfloat16) * 0.8)(D, H * Dh) * (D ** -0.5)),
            "wo": _w((lambda *s: torch.randn(*s, dtype=torch.bfloat16) * 0.05)(H * Dh, D) * ((H * Dh) ** -0.5)),
        }
    _B_in = _B_setup()

    return {
        "A_x": _A_in["x"],
        "A_k_cache": _A_in["k_cache"],
        "A_v_cache": _A_in["v_cache"],
        "A_wq": _A_in["wq"],
        "A_wo": _A_in["wo"],
        "B_x": _B_in["x"],
        "B_k_cache": _B_in["k_cache"],
        "B_v_cache": _B_in["v_cache"],
        "B_wq": _B_in["wq"],
        "B_wo": _B_in["wo"],
    }

def reference(A_x, A_k_cache, A_v_cache, A_wq, A_wo, B_x, B_k_cache, B_v_cache, B_wq, B_wo):
    def _A_ref(x, k_cache, v_cache, wq, wo):
        B, Sq, D = x.shape
        Hq, Dh = 32, 128
        Hkv = k_cache.shape[1]
        rep = Hq // Hkv
        q = (lambda x, *d: x.permute(*d))((x @ wq).reshape(B, Sq, Hq, Dh), 0, 2, 1, 3)
        k = (lambda x, n, axis: torch.repeat_interleave(x, n, dim=axis))(k_cache, rep, axis=1)
        v = (lambda x, n, axis: torch.repeat_interleave(x, n, dim=axis))(v_cache, rep, axis=1)
        scores = torch.einsum("bhqd,bhkd->bhqk", q, k) * (Dh ** -0.5)
        p = _softmax(scores, axis=-1)
        o = torch.einsum("bhqk,bhkd->bhqd", p, v)
        return (lambda x, *d: x.permute(*d))(o, 0, 2, 1, 3).reshape(B, Sq, Hq * Dh) @ wo

    def _B_ref(x, k_cache, v_cache, wq, wo):
        B, Sq, D = x.shape
        H, Dh = 32, 128
        q = (lambda x, *d: x.permute(*d))((x @ wq).reshape(B, Sq, H, Dh), 0, 2, 1, 3)
        scores = torch.einsum("bhqd,bhkd->bhqk", q, k_cache) * (Dh ** -0.5)
        p = _softmax(scores, axis=-1)
        o = torch.einsum("bhqk,bhkd->bhqd", p, v_cache)
        return (lambda x, *d: x.permute(*d))(o, 0, 2, 1, 3).reshape(B, Sq, H * Dh) @ wo

    a = _A_ref(A_x, A_k_cache, A_v_cache, A_wq, A_wo)
    b = _B_ref(B_x, B_k_cache, B_v_cache, B_wq, B_wo)
    return torch.concatenate([a, b], axis=-1)
```

```python
import re

REG_RE = re.compile(r'\b([vas])(\d+)\b|\b([vas])\[(\d+):(\d+)\]|\b(vcc|exec|m0|scc)\b')

def regs_of(tok):
    out = []
    for m in REG_RE.finditer(tok):
        if m.group(1):
            out.append(m.group(1) + m.group(2))
        elif m.group(3):
            for i in range(int(m.group(4)), int(m.group(5)) + 1):
                out.append(m.group(3) + str(i))
        else:
            out.append(m.group(6))
    return out

TRANS = ('v_exp_f32', 'v_log_f32', 'v_rcp_f32', 'v_rsq_f32', 'v_sqrt_f32', 'v_sin_f32', 'v_cos_f32')

class I:
    __slots__ = ('text', 'kind', 'rd', 'wr', 'lgkm', 'vm', 'nops', 'tag', 'need', 'op', 'srcC', 'dstD', 'comment')
    def __init__(self, text, tag=None, need=None):
        self.text = text
        self.tag = tag
        self.need = need
        self.lgkm = None
        self.vm = None
        self.nops = 0
        self.srcC = []
        self.dstD = []
        self.parse()
    def parse(self):
        t = self.text.split(';')[0].strip()
        if t.endswith(':') or t.startswith('.') or t == '':
            self.kind = 'label'; self.rd = []; self.wr = []; self.op = ''; return
        sp = t.split(None, 1)
        op = sp[0]; self.op = op
        rest = sp[1] if len(sp) > 1 else ''
        ops = [x.strip() for x in rest.split(',')] if rest else []
        rd = []; wr = []
        if op.startswith('v_mfma'):
            self.kind = 'mfma'
            wr = regs_of(ops[0]); rd = regs_of(ops[1]) + regs_of(ops[2]) + regs_of(ops[3])
            self.srcC = regs_of(ops[3]); self.dstD = wr
        elif op.startswith('v_'):
            self.kind = 'trans' if op.replace('_e32', '').replace('_e64', '') in TRANS else 'valu'
            if op.startswith('v_permlane') and 'swap' in op:
                wr = regs_of(ops[0]) + regs_of(ops[1]); rd = list(wr)
            elif op.startswith('v_cmp'):
                wr = regs_of(ops[0]); rd = sum((regs_of(x) for x in ops[1:]), [])
                if op.startswith('v_cmpx'): wr = wr + ['exec']
            elif op.startswith(('v_add_co', 'v_sub_co', 'v_addc_co', 'v_subb_co', 'v_subrev_co')):
                wr = regs_of(ops[0]) + regs_of(ops[1]); rd = sum((regs_of(x) for x in ops[2:]), [])
            else:
                wr = regs_of(ops[0]); rd = sum((regs_of(x) for x in ops[1:]), [])
                if op.startswith(('v_fmac', 'v_dot2c', 'v_pk_fmac')): rd = rd + wr
                if op.startswith('v_cndmask') and len(ops) == 3: rd = rd + ['vcc']
        elif op.startswith('ds_'):
            self.kind = 'lds'
            if op.startswith(('ds_read', 'ds_bpermute', 'ds_permute', 'ds_swizzle')):
                wr = regs_of(ops[0]); rd = sum((regs_of(x) for x in ops[1:]), [])
            else:
                rd = sum((regs_of(x) for x in ops), [])
        elif op.startswith(('buffer_', 'global_')):
            self.kind = 'vmem'
            islds = re.search(r'\blds\b', rest) is not None
            if op.startswith(('buffer_load', 'global_load')) and not islds and '_lds_' not in op:
                wr = regs_of(ops[0]); rd = sum((regs_of(x) for x in ops[1:]), [])
            else:
                rd = sum((regs_of(x) for x in ops), [])
                if islds or '_lds_' in op: rd = rd + ['m0']
        elif op.startswith('s_'):
            self.kind = 'salu'
            if op in ('s_waitcnt', 's_barrier', 's_nop', 's_endpgm', 's_branch', 's_setprio', 's_sleep') or op.startswith('s_cbranch'):
                self.kind = 'ctl'
                if op in ('s_cbranch_vccz', 's_cbranch_vccnz'): rd = ['vcc']
                if op in ('s_cbranch_execz', 's_cbranch_execnz'): rd = ['exec']
            elif op.startswith('s_cmp') or op.startswith('s_bitcmp'):
                rd = sum((regs_of(x) for x in ops), [])
            elif op.startswith(('s_load', 's_memtime', 's_memrealtime', 's_buffer_load')):
                self.kind = 'smem'
                wr = regs_of(ops[0]); rd = sum((regs_of(x) for x in ops[1:]), [])
            else:
                wr = regs_of(ops[0]); rd = sum((regs_of(x) for x in ops[1:]), [])
                if 'saveexec' in op: wr = wr + ['exec']; rd = rd + ['exec']
        elif op == 'waitvm':
            self.kind = 'waitvm'
        else:
            raise ValueError('unknown op ' + t)
        self.rd = rd; self.wr = wr

class Prog:
    def __init__(self):
        self.blocks = {}
        self.order = []
        self.cur = None
    def block(self, name):
        self.cur = []
        self.blocks[name] = self.cur
        self.order.append(name)
        return self.cur
    def e(self, text, tag=None, need=None):
        for line in text.split('\n'):
            line = line.strip()
            if line:
                self.cur.append(I(line, tag, need))
    def waitvm(self, need):
        self.cur.append(I('waitvm', need=set(need)))

    def wait_pass(self, path):
        changed = False
        lq = []
        vq = []
        for bname in path:
            for ins in self.blocks[bname]:
                if ins.kind == 'label': continue
                need_l = None; need_v = None
                touched = set(ins.rd) | set(ins.wr)
                if ins.op == 's_waitcnt':
                    m = re.search(r'lgkmcnt\((\d+)\)', ins.text)
                    if m:
                        n = int(m.group(1)); lq = lq[len(lq) - n:] if n < len(lq) else lq
                        if n == 0: lq = []
                    m = re.search(r'vmcnt\((\d+)\)', ins.text)
                    if m:
                        n = int(m.group(1)); vq = vq[len(vq) - n:] if n < len(vq) else vq
                        if n == 0: vq = []
                    continue
                for idx, (o, w) in enumerate(lq):
                    if w & touched:
                        n = len(lq) - 1 - idx
                        if o.kind == 'smem' or any(x.kind == 'smem' for x, _ in lq): n = 0
                        need_l = n if need_l is None else min(need_l, n)
                for idx, (o, w) in enumerate(vq):
                    hit = bool(w & touched)
                    if ins.kind == 'waitvm' and o.tag in ins.need: hit = True
                    if hit:
                        n = len(vq) - 1 - idx
                        need_v = n if need_v is None else min(need_v, n)
                if need_l is not None:
                    need_l = min(need_l, 15)
                    if ins.lgkm is None or need_l < ins.lgkm:
                        ins.lgkm = need_l; changed = True
                if need_v is not None:
                    need_v = min(need_v, 63)
                    if ins.vm is None or need_v < ins.vm:
                        ins.vm = need_v; changed = True
                if ins.lgkm is not None:
                    n = ins.lgkm
                    lq = lq[len(lq) - n:] if 0 < n < len(lq) else ([] if n == 0 else lq)
                if ins.vm is not None:
                    n = ins.vm
                    vq = vq[len(vq) - n:] if 0 < n < len(vq) else ([] if n == 0 else vq)
                if ins.kind in ('lds', 'smem'):
                    lq.append((ins, set(ins.wr)))
                    assert len(lq) <= 64
                elif ins.kind == 'vmem':
                    vq.append((ins, set(ins.wr)))
        return changed

    def hazard_pass(self, path, report=False):
        changed = False
        hist = []
        pos = 0
        last = {}
        def req(cls, regs, dist):
            m = 0
            for r in regs:
                p = last.get((cls, r))
                if p is not None:
                    m = max(m, dist - (pos - p - 1))
            return m
        for bname in path:
            for ins in self.blocks[bname]:
                if ins.kind == 'label': continue
                pre = 1 if (ins.lgkm is not None or ins.vm is not None) else 0
                pos += pre + ins.nops
                if ins.kind == 'waitvm':
                    continue
                need = 0
                k = ins.kind
                vrd = [r for r in ins.rd if r[0] in 'va' and r != 'vcc']
                vwr = [r for r in ins.wr if r[0] in 'va' and r != 'vcc']
                srd = [r for r in ins.rd if r[0] == 's' or r in ('vcc', 'm0', 'exec')]
                if k == 'mfma':
                    need = max(need, req('valu_w', vrd, 2))
                    ab = [r for r in vrd if r not in ins.srcC]
                    need = max(need, req('mfma_w', ab, 8))
                    for r in ins.srcC:
                        p = last.get(('mfma_w', r))
                        if p is not None and last.get(('mfma_wD', r)) != tuple(ins.srcC):
                            need = max(need, 6 - (pos - p - 1))
                    need = max(need, req('valu_wexec', ['exec'], 4))
                elif k in ('valu', 'trans'):
                    need = max(need, req('mfma_w', vrd + vwr, 8))
                    need = max(need, req('mfma_c', vwr, 3))
                    if k == 'valu':
                        need = max(need, req('trans_w', vrd, 1))
                    if ins.op.startswith('v_permlane'):
                        need = max(need, req('valu_w', vrd, 2))
                    if 'dpp' in ins.text or 'row_' in ins.text:
                        need = max(need, req('valu_w', vrd, 2))
                    if ins.op.startswith(('v_readfirstlane', 'v_readlane')):
                        need = max(need, req('valu_w', vrd, 1))
                    need = max(need, req('valu_ws', srd + (['vcc'] if 'vcc' in ins.rd else []), 2))
                    need = max(need, req('store_d', vwr, 2))
                elif k in ('lds', 'vmem'):
                    need = max(need, req('mfma_w', vrd + vwr, 8))
                    need = max(need, req('valu_ws', srd, 5))
                    if 'm0' in ins.rd:
                        need = max(need, req('salu_w', ['m0'], 1))
                    need = max(need, req('store_d', vwr, 1))
                elif k in ('salu', 'ctl', 'smem'):
                    need = max(need, req('valu_ws', srd, 4))
                if need > 0:
                    ins.nops += need; pos += need; changed = True
                    if report: print('hazard nop', need, 'before', ins.text)
                if k in ('valu', 'trans'):
                    for r in vwr: last[('valu_w', r)] = pos
                    for r in ins.wr:
                        if r[0] == 's' or r == 'vcc': last[('valu_ws', r)] = pos
                        if r == 'exec': last[('valu_wexec', r)] = pos
                    if k == 'trans':
                        for r in vwr: last[('trans_w', r)] = pos
                    else:
                        for r in vwr: last.pop(('trans_w', r), None)
                    for r in vwr: last.pop(('mfma_w', r), None)
                elif k == 'mfma':
                    for r in ins.dstD:
                        last[('mfma_w', r)] = pos; last[('mfma_wD', r)] = tuple(ins.dstD)
                        last.pop(('valu_w', r), None)
                    for r in ins.srcC: last[('mfma_c', r)] = pos
                elif k == 'salu':
                    for r in ins.wr: last[('salu_w', r)] = pos
                elif k == 'vmem' and 'store' in ins.op and ('x4' in ins.op or 'x3' in ins.op):
                    for r in vrd: last[('store_d', r)] = pos
                elif k == 'lds' and ins.op in ('ds_write_b128', 'ds_write_b96'):
                    for r in vrd: last[('store_d', r)] = pos
                if ins.op == 's_nop':
                    pos += int(ins.text.split()[1], 0) + 1
                else:
                    pos += 1
        return changed

    def finalize(self, paths, report=False):
        for it in range(50):
            ch = False
            for p in paths: ch |= self.wait_pass(p)
            if not ch: break
        for it in range(50):
            ch = False
            for p in paths: ch |= self.hazard_pass(p, report)
            if not ch: break

    def emit(self):
        out = []
        for b in self.order:
            for ins in self.blocks[b]:
                w = []
                if ins.vm is not None: w.append('vmcnt(%d)' % ins.vm)
                if ins.lgkm is not None: w.append('lgkmcnt(%d)' % ins.lgkm)
                if w: out.append('  s_waitcnt ' + ' '.join(w))
                n = ins.nops
                while n > 0:
                    k = min(n, 16); out.append('  s_nop %d' % (k - 1)); n -= k
                if ins.kind == 'waitvm': continue
                out.append(ins.text if ins.kind == 'label' else '  ' + ins.text)
        return '\n'.join(out) + '\n'
    def stats(self, name):
        from collections import Counter
        c = Counter()
        for ins in self.blocks[name]:
            c[ins.kind] += 1
            if ins.vm is not None or ins.lgkm is not None: c['autowait'] += 1
            c['nops'] += ins.nops
        return dict(c)
```

```python
from asmlib import *
import math

WF_OFF = 0x2400000
CSCALE = math.log2(math.e) / math.sqrt(128.0)
import struct
def f32bits(x): return struct.unpack('<I', struct.pack('<f', x))[0]

S_X, S_WQ, S_K, S_V, S_WS, S_WO = 8, 12, 16, 20, 24, 28
sW, sPAR, sP, sB, sHP = 32, 33, 34, 35, 36
sT0, sT1, sT2, sT3 = 37, 38, 39, 40
sXO, sWO_, sM0, sCNT, sDELTA, sSLOT = 41, 42, 43, 44, 45, 46
sKO, sHEAD, sGIVEN, sOFB, sC, sBIG = 47, 48, 49, 50, 51, 52
sMK, sMV = 53, 54
sOT = 56
def srd(b): return 's[%d:%d]' % (b, b + 3)

def vr(b, n=4): return 'v[%d:%d]' % (b, b + n - 1)
def ar(b, n=4): return 'a[%d:%d]' % (b, b + n - 1)

QSLOT = 36864
WOFF = 20480

def gen_k1(P, name='attn_kernel', dbg=None):
    e = P.e
    paths = []
    P.block('k1_pre')
    e('.p2align 8')
    e('.globl %s' % name)
    e('.type %s,@function' % name)
    e('%s:' % name)
    e('s_cmp_ge_u32 s2, 256')
    e('s_cbranch_scc1 K1_DONE')
    e('s_load_dwordx16 s[64:79], s[0:1], 0')
    e('s_load_dwordx8 s[80:87], s[0:1], 64')
    e('s_load_dwordx2 s[88:89], s[0:1], 96')
    e('v_lshrrev_b32 v1, 6, v0')
    e('v_and_b32 v2, 63, v0')
    e('v_readfirstlane_b32 s%d, v1' % sW)
    e('s_and_b32 s%d, s%d, 1' % (sPAR, sW))
    e('s_and_b32 s37, s2, 7')
    e('s_lshr_b32 s38, s2, 3')
    e('s_lshr_b32 s%d, s37, 2' % sP)
    e('s_and_b32 s39, s37, 2')
    e('s_lshl_b32 s39, s39, 1')
    e('s_and_b32 s40, s38, 3')
    e('s_add_u32 s%d, s39, s40' % sB)
    e('s_and_b32 s39, s37, 1')
    e('s_lshl_b32 s39, s39, 3')
    e('s_lshr_b32 s40, s38, 2')
    e('s_add_u32 s%d, s39, s40' % sHP)
    e('s_waitcnt lgkmcnt(0)')
    e('s_cmp_eq_u32 s%d, 0' % sP)
    e('s_cselect_b64 s[90:91], s[64:65], s[74:75]')
    e('s_cselect_b64 s[92:93], s[66:67], s[76:77]')
    e('s_cselect_b64 s[94:95], s[68:69], s[78:79]')
    e('s_cselect_b64 s[96:97], s[70:71], s[80:81]')
    e('s_mul_i32 s37, s%d, 368640' % sB)
    e('s_add_u32 s%d, s90, s37' % S_X)
    e('s_addc_u32 s%d, s91, 0' % (S_X + 1))
    e('s_mov_b32 s%d, 368640' % (S_X + 2))
    e('s_mov_b32 s%d, 0x00020000' % (S_X + 3))
    e('s_mov_b32 s%d, s96' % S_WQ)
    e('s_mov_b32 s%d, s97' % (S_WQ + 1))
    e('s_mov_b32 s%d, 5242880' % (S_WQ + 2))
    e('s_mov_b32 s%d, 0x00020000' % (S_WQ + 3))
    e('s_lshl_b32 s37, s%d, 5' % sB)
    e('s_lshl_b32 s38, s%d, 1' % sHP)
    e('s_add_u32 s37, s37, s38')
    e('s_lshl_b32 s37, s37, 18')
    for (S, src) in ((S_K, 92), (S_V, 94)):
        e('s_add_u32 s%d, s%d, s37' % (S, src))
        e('s_addc_u32 s%d, s%d, 0' % (S + 1, src + 1))
        e('s_mov_b32 s%d, 524288' % (S + 2))
        e('s_mov_b32 s%d, 0x00020000' % (S + 3))
    e('s_mov_b32 s%d, s88' % S_WS)
    e('s_mov_b32 s%d, s89' % (S_WS + 1))
    e('s_mov_b32 s%d, %d' % (S_WS + 2, WF_OFF + 10485760))
    e('s_mov_b32 s%d, 0x00020000' % (S_WS + 3))
    e('s_lshr_b32 s37, s2, 7')
    e('s_cmp_eq_u32 s37, 0')
    e('s_cselect_b64 s[98:99], s[72:73], s[82:83]')
    e('s_and_b32 s38, s2, 127')
    e('s_mul_i32 s39, s38, 40960')
    e('s_add_u32 s%d, s98, s39' % S_WO)
    e('s_addc_u32 s%d, s99, 0' % (S_WO + 1))
    e('s_mov_b32 s%d, 40960' % (S_WO + 2))
    e('s_mov_b32 s%d, 0x00020000' % (S_WO + 3))
    e('s_lshl_b32 s39, s37, 3')
    e('s_lshl_b32 s40, s%d, 1' % sW)
    e('s_add_u32 s39, s39, s40')
    e('s_lshl_b32 s39, s39, 7')
    e('s_add_u32 s39, s39, s38')
    e('s_mul_i32 s61, s39, 5120')
    e('s_add_u32 s61, s61, %d' % WF_OFF)
    e('s_mov_b32 s%d, 0x%08x' % (sC, f32bits(CSCALE)))
    e('s_mov_b32 s%d, 0x%08x' % (sBIG, f32bits(2.0 ** 40)))

    e('v_and_b32 v3, 15, v2')
    e('v_lshrrev_b32 v4, 4, v2')
    e('v_lshrrev_b32 v5, 2, v3')
    e('v_and_b32 v6, 3, v2')
    e('v_lshlrev_b32 v7, 4, v2')
    WOS = 122880
    e('s_lshl_b32 s37, s%d, 10' % sW)
    e('s_add_u32 s38, s37, %d' % WOS)
    for i in range(10):
        e('s_mov_b32 m0, s38')
        e('buffer_load_dwordx4 v7, %s, s37 offen lds' % srd(S_WO), tag='wo')
        if i < 9:
            e('s_add_u32 s37, s37, 4096')
            e('s_add_u32 s38, s38, 4096')
    vXD, vWD0, vWD1 = 8, 9, 10
    e('v_sub_u32 v11, 0, v4')
    e('v_and_b32 v11, 3, v11')
    e('v_xor_b32 v12, v6, v11')
    e('v_lshlrev_b32 v12, 4, v12')
    e('v_lshrrev_b32 v13, 2, v2')
    e('s_movk_i32 s37, 1280')
    e('v_mul_lo_u32 v13, v13, s37')
    e('v_add_u32 v%d, v12, v13' % vXD)
    e('v_lshrrev_b32 v12, 5, v2')
    e('v_and_b32 v13, 31, v2')
    e('s_lshl_b32 s37, s%d, 1' % sPAR)
    e('v_add_u32 v14, s37, v12')
    e('v_lshlrev_b32 v14, 1, v14')
    e('v_xor_b32 v15, v13, v14')
    e('v_lshlrev_b32 v15, 4, v15')
    e('v_lshlrev_b32 v12, 13, v12')
    e('v_add_u32 v%d, v15, v12' % vWD0)
    e('v_xor_b32 v%d, 128, v%d' % (vWD1, vWD0))
    e('s_mul_i32 s%d, s%d, %d' % (sXO, sW, 16 * 1280))
    e('s_lshl_b32 s37, s%d, 14' % sW)
    e('s_lshl_b32 s38, s%d, 9' % sHP)
    e('s_add_u32 s%d, s37, s38' % sWO_)
    e('s_lshl_b32 s%d, s%d, 10' % (sM0, sW))

    def qdma(tag):
        G = []
        for i in range(5):
            g = []
            g.append('s_add_u32 m0, s%d, %d' % (sM0, i * 4096))
            g.append('s_add_u32 s%d, s%d, %d' % (sT0, sXO, i * 4 * 16 * 1280))
            g.append(('buffer_load_dwordx4 v%d, %s, s%d offen lds' % (vXD, srd(S_X), sT0), tag))
            G.append(g)
        for i in range(4):
            g = []
            g.append('s_add_u32 m0, s%d, %d' % (sM0, WOFF + i * 4096))
            g.append('s_add_u32 s%d, s%d, %d' % (sT0, sWO_, i * 8 * 8192))
            g.append(('buffer_load_dwordx4 v%d, %s, s%d offen lds' % (vWD0 if i % 2 == 0 else vWD1, srd(S_WQ), sT0), tag))
            G.append(g)
        return G
    def emit_groups(G):
        for g in G:
            for x in g:
                if isinstance(x, tuple): e(x[0], tag=x[1])
                else: e(x)
    def qadv(slot_next):
        return ['s_add_u32 s%d, s%d, 64' % (sXO, sXO),
                's_add_u32 s%d, s%d, %d' % (sWO_, sWO_, 32 * 8192),
                's_add_u32 s%d, s%d, %d' % (sM0, sM0, QSLOT if slot_next != 0 else -3 * QSLOT & 0xffffffff)]
    for c in range(3):
        emit_groups(qdma('q%d' % c))
        for x in qadv((c + 1) % 4): e(x)
    vXA, vXS = 16, 17
    vWX, vWY = 18, 26
    e('v_xor_b32 v12, v4, v11')
    e('v_sub_u32 v12, 0, v5')
    e('v_and_b32 v12, 3, v12')
    e('v_xor_b32 v12, v4, v12')
    e('v_lshlrev_b32 v12, 4, v12')
    e('v_lshlrev_b32 v13, 6, v3')
    e('v_add_u32 v12, v12, v13')
    e('s_lshl_b32 s37, s%d, 12' % sW)
    e('v_add_u32 v%d, s37, v12' % vXA)
    e('s_lshr_b32 s37, s%d, 1' % sW)
    e('s_lshl_b32 s37, s37, 10')
    e('s_add_u32 s37, s37, %d' % (256 * 64))
    e('v_add_u32 v%d, s37, v12' % vXS)
    e('v_and_b32 v12, 1, v4')
    e('v_lshlrev_b32 v12, 2, v12')
    e('v_or_b32 v12, v12, v5')
    e('v_lshlrev_b32 v13, 3, v4')
    e('v_add_u32 v13, v13, v5')
    e('v_lshlrev_b32 v13, 9, v13')
    e('v_lshlrev_b32 v14, 3, v6')
    e('v_add_u32 v13, v13, v14')
    e('s_lshl_b32 s37, s%d, 8' % sPAR)
    e('s_add_u32 s38, s37, %d' % WOFF)
    e('s_xor_b32 s37, s37, 256')
    e('s_add_u32 s39, s37, %d' % WOFF)
    for t0 in range(8):
        e('v_xor_b32 v14, %d, v12' % t0)
        e('v_lshlrev_b32 v14, 5, v14')
        e('v_add_u32 v14, v14, v13')
        e('v_add_u32 v%d, s38, v14' % (vWX + t0))
        e('v_add_u32 v%d, s39, v14' % (vWY + t0))
    e('v_lshlrev_b32 v12, 2, v4')
    e('v_add_u32 v12, v12, v5')
    e('s_movk_i32 s37, 1280')
    e('v_mul_lo_u32 v12, v12, s37')
    e('s_mul_i32 s37, s%d, 320' % sW)
    e('s_add_u32 s37, s37, %d' % WOS)
    e('v_add_u32 v12, s37, v12')
    e('v_lshlrev_b32 v13, 4, v6')
    e('v_add_u32 v13, v12, v13')
    e('v_lshlrev_b32 v14, 3, v6')
    e('v_add_u32 v14, v12, v14')
    P.waitvm(['wo'])
    e('s_barrier')
    base = 40
    for g2 in range(2):
        for t in range(5):
            r = base + 4 * (g2 * 5 + t)
            if t < 4: a = 'v13'; off = g2 * 160 + (t // 2) * 64 + (t % 2) * 8
            else: a = 'v14'; off = g2 * 160 + 128
            e('ds_read_b64_tr_b16 %s, %s offset:%d' % (vr(r, 2), a, off))
            e('ds_read_b64_tr_b16 %s, %s offset:%d' % (vr(r + 2, 2), a, off + 16 * 1280))
    for g2 in range(2):
        e('s_add_u32 s37, s61, %d' % (g2 * 128 * 5120))
        e('s_add_u32 s38, s37, 4096')
        for t in range(5):
            r = base + 4 * (g2 * 5 + t)
            if t < 4: e('buffer_store_dwordx4 %s, v7, %s, s37 offen offset:%d' % (vr(r), srd(S_WS), t * 1024), tag='wfst')
            else: e('buffer_store_dwordx4 %s, v7, %s, s38 offen' % (vr(r), srd(S_WS)), tag='wfst')
    e('s_waitcnt lgkmcnt(0)')
    P.waitvm(['q0'])
    e('s_barrier')
    emit_groups(qdma('q3'))
    for x in qadv(0): e(x)

    tiles = [('X', t0, q) for t0 in range(8) for q in range(5)] + [('Y', t0, q) for t0 in range(8) for q in range(4)]
    accmap = {}
    nv = 0; na = 0
    for tl in [t for t in tiles if t[0] == 'Y'] + [t for t in tiles if t[0] == 'X']:
        if nv < 48:
            accmap[tl] = ('v', 64 + 4 * nv); nv += 1
        else:
            accmap[tl] = ('a', 4 * na); na += 1
    def acc(g, t0, q):
        k, b = accmap[(g, t0, q)]; return '%s[%d:%d]' % (k, b, b + 3)
    ARING = 96
    BF = 112
    def bfrag(par, q): return ar(BF + 20 * par + 4 * q)
    def aslot(i): return ar(ARING + 4 * (i % 4))
    for tl in tiles:
        k, b = accmap[tl]
        for i in range(4):
            e('v_mov_b32 v%d, 0' % (b + i) if k == 'v' else 'v_accvgpr_write_b32 a%d, 0' % (b + i))

    def a_loads(i):
        va = (vWX + i) if i < 8 else (vWY + i - 8)
        r = ARING + 4 * (i % 4)
        return ['ds_read_b64_tr_b16 %s, v%d' % (ar(r, 2), va), 'ds_read_b64_tr_b16 %s, v%d offset:2048' % (ar(r + 2, 2), va)]
    def b_loads(par):
        L = ['ds_read_b128 %s, v%d offset:%d' % (bfrag(par, q), vXA, q * 1024) for q in range(4)]
        L.append('ds_read_b128 %s, v%d' % (bfrag(par, 4), vXS))
        return L
    def addr_adv(slot_next):
        d = QSLOT if slot_next != 0 else -3 * QSLOT & 0xffffffff
        return ['v_add_u32 v%d, 0x%x, v%d' % (r, d, r) for r in [vXA, vXS] + list(range(vWX, vWX + 16))]
    for x in b_loads(0): e(x)
    for i in range(4):
        for x in a_loads(i): e(x)

    def qchunk(c, last_dma, kv=None):
        par = c % 2
        seq = []
        for i in range(16):
            for q in range(5 if i < 8 else 4):
                seq.append((i, q))
        fill = {g: [] for g in range(len(seq))}
        first = {}
        for g, (i, q) in enumerate(seq): first.setdefault(i, g)
        lastuse = {}
        for g, (i, q) in enumerate(seq): lastuse[i] = g
        for i in range(4, 16):
            g = lastuse[i - 4]
            fill[g] += a_loads(i)
        gl = lastuse[11]
        adv = addr_adv((c + 1) % 4)
        g = gl + 1
        for k in range(0, len(adv), 3):
            fill[g] += adv[k:k + 3]; g += 1
        gb = g
        fill[gb].append(('BAR', c + 1))
        nb = b_loads(1 - par)
        fill[gb] += nb[:2]; fill[gb + 1] += nb[2:]
        for i in range(4):
            gg = max(lastuse[12 + i], gb + 2)
            fill[gg] += a_loads(i)
        return seq, fill, gb, par

    def emit_qchunk(c, dma_groups, need_tag, skip_next_loads=False):
        seq, fill, gb, par = qchunk(c, None)
        dpos = [2 + 5 * k for k in range(len(dma_groups))]
        for g, (i, q) in enumerate(seq):
            grp = 'X' if i < 8 else 'Y'
            a = acc(grp, i % 8, q)
            e('v_mfma_f32_16x16x32_bf16 %s, %s, %s, %s' % (a, aslot(i), bfrag(par, q), a))
            if g in dpos:
                emit_groups([dma_groups[dpos.index(g)]])
            for x in fill[g]:
                if isinstance(x, tuple):
                    P.waitvm([need_tag])
                    e('s_waitcnt lgkmcnt(0)')
                    e('s_barrier')
                elif skip_next_loads and g >= gb and x.startswith('ds_read'):
                    pass
                else:
                    e(x)
    P.block('k1_q0')
    emit_qchunk(0, [], 'q1')
    P.block('k1_qloop')
    e('K1_QLOOP:')
    for cc in range(1, 5):
        G = qdma('q%d' % ((cc + 3) % 4))
        G[-1] = G[-1] + qadv((cc + 4) % 4)
        emit_qchunk(cc, G, 'q%d' % ((cc + 1) % 4))
    e('s_sub_u32 s%d, s%d, 1' % (sCNT, sCNT))
    e('s_cmp_lg_u32 s%d, 0' % sCNT)
    e('s_cbranch_scc1 K1_QLOOP')
    P.cur = P.blocks['k1_q0']; e('s_mov_b32 s%d, 4' % sCNT)

    P.block('k1_qtail')
    vKD = 34
    vVD = 38
    e('v_lshlrev_b32 v12, 8, v4')
    e('s_lshl_b32 s37, s%d, 12' % sW)
    e('v_add_u32 v12, s37, v12')
    for i in range(4):
        e('v_add_u32 v13, %d, v4' % (4 * i))
        e('v_xor_b32 v13, v13, v3')
        e('v_lshlrev_b32 v13, 4, v13')
        e('v_add_u32 v%d, v13, v12' % (vKD + i))
    for i in range(2):
        e('v_add_u32 v13, %d, v4' % (4 * i))
        e('v_lshlrev_b32 v13, 1, v13')
        e('v_xor_b32 v13, v13, v3')
        e('v_lshlrev_b32 v13, 4, v13')
        e('v_add_u32 v%d, v13, v12' % (vVD + i))
    e('s_mov_b32 s%d, 0' % sKO)
    e('s_lshl_b32 s%d, s%d, 12' % (sMK, sW))
    def kdma(pslot, tag):
        G = []
        for i in range(4):
            g = []
            if i == 0: g.append('s_add_u32 m0, s%d, %d' % (sMK, pslot * 16384))
            g.append(('buffer_load_dwordx4 v%d, %s, s%d offen offset:%d nt lds' % (vKD + i, srd(S_K), sKO, i * 1024), tag))
            G.append(g)
        return G
    def vdma(pslot, tag, soff):
        G = []
        for i in range(4):
            g = []
            if i == 0: g.append('s_add_u32 m0, s%d, %d' % (sMK, 65536 + pslot * 16384))
            g.append(('buffer_load_dwordx4 v%d, %s, s%d offen offset:%d nt lds' % (vVD + i % 2, srd(S_V), soff, i * 1024), tag))
            G.append(g)
        return G
    G = kdma(0, 'p0'); G[-1] = G[-1] + ['s_add_u32 s%d, s%d, 16384' % (sKO, sKO)]
    G2 = kdma(1, 'p1')
    emit_qchunk(17, G + G2, 'q2')
    emit_qchunk(18, [], 'q3')
    e('s_mov_b32 s%d, 0' % sT1)
    e('s_mov_b32 s%d, 16384' % sT2)
    G = vdma(0, 'p0', sT1) + vdma(1, 'p1', sT2)
    emit_qchunk(19, G, 'none', skip_next_loads=True)
    e('s_mov_b32 s%d, 32768' % sKO)
    return dict(accmap=accmap, vKD=vKD, vVD=vVD)
```

```python
from asmlib import *
from k1 import *

vQ = 64
vSF = 144
vSS = 184
vNM = 216
vL = 236
vVR = 40
vONE = 56
vKF, vKS = 8, 12
vVF, vVS = 16, 24
aO = 0
aQN = 160
aKR = 240

def Qf(qt, ds): return vr(vQ + 16 * qt + 4 * ds)
def QN(qt, ds): return aQN + 16 * qt + 4 * ds
def O(qt, dt): return ar(aO + 32 * qt + 4 * dt)
def NM(qt): return vr(vNM + 4 * qt)
def Lr(qt): return vr(vL + 4 * qt)
def Sreg(kind, qt): return (vSF if kind == 'F' else vSS) + 8 * qt

NG = 153
XA = 131072

def gen_fixup(P, info, paths_prefix):
    e = P.e
    accmap = info['accmap']
    names = []
    P.block('k1_fx')
    e('s_cmp_eq_u32 s%d, 1' % sPAR)
    e('s_cbranch_scc1 K1_FX1')
    for par in range(2):
        P.block('k1_fx%d' % par)
        if par == 1: e('K1_FX1:')
        def src(hd, ds, q, which):
            grp = 'X' if hd == par else 'Y'
            return accmap[(grp, 2 * ds + which, q)]
        tmp = [40, 44, 48, 52, 56, 60]
        tcount = [0]
        def make_frag(hd, ds, q):
            A = src(hd, ds, q, 0); B = src(hd, ds, q, 1)
            regs = []
            for (k, b) in (A, B):
                if k == 'a':
                    t = tmp[tcount[0] % 6]; tcount[0] += 1
                    for i in range(4): e('v_accvgpr_read_b32 v%d, a%d' % (t + i, b + i))
                    regs.append(t)
                else:
                    regs.append(b)
            for rb in regs:
                for i in range(4): e('v_mul_f32 v%d, s%d, v%d' % (rb + i, sC, rb + i))
            d = tmp[tcount[0] % 6]; tcount[0] += 1
            e('v_cvt_pk_bf16_f32 v%d, v%d, v%d' % (d + 0, regs[0], regs[0] + 1))
            e('v_cvt_pk_bf16_f32 v%d, v%d, v%d' % (d + 1, regs[0] + 2, regs[0] + 3))
            e('v_cvt_pk_bf16_f32 v%d, v%d, v%d' % (d + 2, regs[1], regs[1] + 1))
            e('v_cvt_pk_bf16_f32 v%d, v%d, v%d' % (d + 3, regs[1] + 2, regs[1] + 3))
            e('v_permlane32_swap_b32 v%d, v%d' % (d + 0, d + 2))
            e('v_permlane32_swap_b32 v%d, v%d' % (d + 1, d + 3))
            e('v_permlane16_swap_b32 v%d, v%d' % (d + 0, d + 2))
            e('v_permlane16_swap_b32 v%d, v%d' % (d + 1, d + 3))
            return d
        def stage0(q, ds): return 96 + 16 * q + 4 * ds
        e('s_lshl_b32 s%d, s%d, 12' % (sT0, sW))
        e('s_add_u32 s%d, s%d, %d' % (sT0, sT0, XA))
        e('v_add_u32 v32, s%d, v7' % sT0)
        for ds in range(4):
            d = make_frag(par, ds, 4)
            e('ds_write_b128 v32, %s offset:%d' % (vr(d), ds * 1024))
        for hd in (1, 0):
            for q in range(4):
                for ds in range(4):
                    d = make_frag(hd, ds, q)
                    dst = QN(q, ds) if hd == 1 else stage0(q, ds)
                    for i in range(4): e('v_accvgpr_write_b32 a%d, v%d' % (dst + i, d + i))
        e('s_waitcnt lgkmcnt(0)')
        e('s_barrier')
        e('s_and_b32 s%d, s%d, 2' % (sT0, sW))
        e('s_lshl_b32 s%d, s%d, 12' % (sT0, sT0))
        e('s_add_u32 s%d, s%d, %d' % (sT0, sT0, XA))
        e('v_add_u32 v32, s%d, v7' % sT0)
        for ds in range(4):
            e('ds_read_b128 %s, v32 offset:%d' % (Qf(4, ds), ds * 1024))
            e('ds_read_b128 %s, v32 offset:%d' % (ar(QN(4, ds)), 4096 + ds * 1024))
        for q in range(4):
            for ds in range(4):
                for i in range(4):
                    e('v_accvgpr_read_b32 v%d, a%d' % (vQ + 16 * q + 4 * ds + i, stage0(q, ds) + i))
        if par == 0: e('s_branch K1_ATT')
        names.append('k1_fx%d' % par)
    return names

def gen_attn(P, info, dump=None):
    e = P.e
    vKD, vVD = info['vKD'], info['vVD']
    P.block('k1_asetup')
    e('K1_ATT:')
    e('s_lshl_b32 s%d, s%d, 13' % (sT0, sPAR))
    e('s_xor_b32 s%d, s%d, 8192' % (sT1, sT0))
    e('v_lshlrev_b32 v60, 8, v3')
    for ds in range(4):
        e('v_add_u32 v61, %d, v4' % (4 * ds))
        e('v_xor_b32 v61, v61, v3')
        e('v_lshlrev_b32 v61, 4, v61')
        e('v_add_u32 v61, v61, v60')
        e('v_add_u32 v%d, s%d, v61' % (vKF + ds, sT0))
        e('v_add_u32 v%d, s%d, v61' % (vKS + ds, sT1))
    e('v_lshlrev_b32 v60, 2, v4')
    e('v_add_u32 v60, v60, v5')
    e('v_and_b32 v62, 7, v60')
    e('v_lshlrev_b32 v60, 8, v60')
    e('v_lshlrev_b32 v61, 3, v6')
    e('v_add_u32 v60, v60, v61')
    e('s_add_u32 s%d, s%d, 65536' % (sT0, sT0))
    e('s_add_u32 s%d, s%d, 65536' % (sT1, sT1))
    for dt in range(8):
        e('v_xor_b32 v61, %d, v62' % dt)
        e('v_lshlrev_b32 v61, 5, v61')
        e('v_add_u32 v61, v61, v60')
        e('v_add_u32 v%d, s%d, v61' % (vVF + dt, sT0))
        e('v_add_u32 v%d, s%d, v61' % (vVS + dt, sT1))
    for i in range(4): e('v_mov_b32 v%d, 0x3f803f80' % (vONE + i))
    for qt in range(5):
        if qt < 4:
            e('s_lshl_b32 s%d, s%d, 2' % (sT0, sW)); e('s_add_u32 s%d, s%d, %d' % (sT0, sT0, qt))
        else:
            e('s_lshr_b32 s%d, s%d, 1' % (sT0, sW)); e('s_add_u32 s%d, s%d, 16' % (sT0, sT0))
        e('s_cmp_ge_u32 s%d, 9' % sT0)
        e('s_cselect_b32 s%d, 1, 0' % sT1)
        e('s_mul_i32 s%d, s%d, 9' % (sT2, sT1))
        e('s_sub_u32 s%d, s%d, s%d' % (sT0, sT0, sT2))
        e('s_lshl_b32 s%d, s%d, 4' % (sT2, sP))
        e('s_lshl_b32 s%d, s%d, 1' % (sT3, sB))
        e('s_add_u32 s%d, s%d, s%d' % (sT2, sT2, sT3))
        e('s_add_u32 s%d, s%d, s%d' % (sT2, sT2, sT1))
        e('s_mul_i32 s%d, s%d, %d' % (sT2, sT2, 128 * 9216))
        e('s_lshl_b32 s%d, s%d, 10' % (sT0, sT0))
        e('s_add_u32 s%d, s%d, s%d' % (sOT + qt, sT2, sT0))
    e('s_lshl_b32 s%d, s%d, 3' % (sT0, sHP))
    e('s_mul_i32 s%d, s%d, 9216' % (sOFB, sT0))
    e('s_mov_b32 s%d, 0' % sHEAD)
    e('s_mov_b32 s%d, 0' % sGIVEN)
    P.waitvm(['p0'])
    e('s_barrier')

    def kdma(pslot, tag):
        G = []
        for i in range(4):
            g = []
            if i == 0: g.append('s_add_u32 m0, s%d, %d' % (sMK, pslot * 16384))
            g.append(('buffer_load_dwordx4 v%d, %s, s%d offen offset:%d nt lds' % (vKD + i, srd(S_K), sKO, i * 1024), tag))
            G.append(g)
        return G
    def vdma(pslot, tag):
        G = []
        for i in range(4):
            g = []
            if i == 0: g.append('s_add_u32 m0, s%d, %d' % (sMK, 65536 + pslot * 16384))
            g.append(('buffer_load_dwordx4 v%d, %s, s%d offen offset:%d nt lds' % (vVD + i % 2, srd(S_V), sKO, i * 1024), tag))
            G.append(g)
        G[-1].append('s_add_u32 s%d, s%d, 16384' % (sKO, sKO))
        return G

    GB = 128
    def mfmas(p):
        M = []
        ps = p % 4
        for f in range(8):
            kt, ds = f // 4, f % 4
            for qt in range(5):
                D = vr(Sreg('F', qt) + 4 * kt)
                C = D if ds else NM(qt)
                M.append(dict(ph=1, blk=('F', p), D=D, A=ar(aKR + 4 * (f % 4)), B=Qf(qt, ds), C=C, kf=f, qt=qt, ds=ds))
        for qt in range(4):
            M.append(dict(ph=2, blk=('S', p - 1), D=Lr(qt), A=vr(vONE), B=vr(Sreg('S', qt)), C=Lr(qt), qt=qt, l=True))
        for dt in range(8):
            for qt in range(4):
                M.append(dict(ph=2, blk=('S', p - 1), D=O(qt, dt), A=vr(vVR + 4 * (dt % 4)), B=vr(Sreg('S', qt)), C=O(qt, dt), vf=dt, qt=qt))
        for f in range(8):
            kt, ds = f // 4, f % 4
            for qt in range(4):
                D = vr(Sreg('S', qt) + 4 * kt)
                C = D if ds else NM(qt)
                M.append(dict(ph=3, blk=('S', p), D=D, A=ar(aKR + 4 * (f % 4)), B=Qf(qt, ds), C=C, kf=f, qt=qt, ds=ds))
        for qt in range(5):
            M.append(dict(ph=4, blk=('F', p), D=Lr(qt), A=vr(vONE), B=vr(Sreg('F', qt)), C=Lr(qt), qt=qt, l=True))
        for dt in range(8):
            for qt in range(5):
                M.append(dict(ph=4, blk=('F', p), D=O(qt, dt), A=vr(vVR + 4 * (dt % 4)), B=vr(Sreg('F', qt)), C=O(qt, dt), vf=dt, qt=qt))
        assert len(M) == NG
        return M
    PH0 = {1: 0, 2: 40, 3: 76, 4: 108}
    def fillers(p):
        F = []
        ps = p % 4
        def sm(kind, nq, g0):
            k = 0
            for kt in range(2):
                for qt in range(nq):
                    b = Sreg(kind, qt)
                    for i in range(4):
                        g = g0 + 2 * k
                        r = b + 4 * kt + i
                        F.append((g, 1, 'v_exp_f32 v%d, v%d' % (r, r), (kind, p)))
                        if i % 2 == 1:
                            F.append((g + 1, 2, 'v_cvt_pk_bf16_f32 v%d, v%d, v%d' % (b + 2 * kt + i // 2, r - 1, r), (kind, p)))
                        k += 1
        sm('F', 5, 24)
        sm('S', 4, 104)
        return F
    def kload(kind, p, f):
        kt, ds = f // 4, f % 4
        va = (vKF if kind == 'F' else vKS) + ds
        return ['ds_read_b128 %s, v%d offset:%d' % (ar(aKR + 4 * (f % 4)), va, (p % 4) * 16384 + kt * 4096)]
    def vload(kind, p, dt):
        va = (vVF if kind == 'F' else vVS) + dt
        r = vVR + 4 * (dt % 4)
        return ['ds_read_b64_tr_b16 %s, v%d offset:%d' % (vr(r, 2), va, (p % 4) * 16384),
                'ds_read_b64_tr_b16 %s, v%d offset:%d' % (vr(r + 2, 2), va, (p % 4) * 16384 + 4096)]

    PMIN, PMAX = -1, 17
    slots = {}
    for p in range(PMIN, PMAX):
        for g, m in enumerate(mfmas(p)):
            slots[p * NG + g] = dict(m=m, v=[], l=[], s=[], p=p, g=g)
    for p in range(PMIN, PMAX):
        for (g, prio, text, blk) in fillers(p):
            GG = p * NG + g
            if GG in slots: slots[GG]['v'].append((text, blk))
    def cap(GG):
        s = slots[GG]
        used = sum(2 if t.startswith('v_exp') else 1 for t, _ in s['v']) + len(s['l']) + sum(len(x[1]) if x[0] == 'DMA' else 2 for x in s['s'])
        return 2 - used
    loads = []
    for p in range(PMIN, PMAX):
        base = p * NG
        for f in range(8): loads.append(dict(t='K', blk=('F', p), f=f, use=base + 5 * f, last=base + 5 * f + 4, per=p))
        for f in range(8): loads.append(dict(t='V', blk=('S', p - 1), f=f, use=base + 44 + 4 * f, last=base + 44 + 4 * f + 3, per=p - 1))
        for f in range(8): loads.append(dict(t='K', blk=('S', p), f=f, use=base + 76 + 4 * f, last=base + 76 + 4 * f + 3, per=p))
        for f in range(8): loads.append(dict(t='V', blk=('F', p), f=f, use=base + 113 + 5 * f, last=base + 113 + 5 * f + 4, per=p))
    byring = {'K': [x for x in loads if x['t'] == 'K'], 'V': [x for x in loads if x['t'] == 'V']}
    for ring in byring.values():
        for i, x in enumerate(ring):
            free = ring[i - 4]['last'] if i >= 4 else PMIN * NG
            bar = (x['per'] - 1) * NG + GB + 1
            x['early'] = max(free, bar)
    loads.sort(key=lambda x: x['use'])
    LA_MAX = 40
    for x in loads:
        ops = kload(x['blk'][0], x['blk'][1], x['f']) if x['t'] == 'K' else vload(x['blk'][0], x['blk'][1], x['f'])
        GG = max(x['early'], x['use'] - LA_MAX)
        for op in ops:
            while GG in slots and cap(GG) <= 0: GG += 1
            if GG not in slots: break
            slots[GG]['l'].append((op, x['blk']))
            x.setdefault('at', []).append(GG)
        if 'at' in x and x['use'] - x['at'][-1] < 6 and 2 <= x['blk'][1] <= 8:
            print('WARN short lookahead', x)
    for p in range(PMIN, PMAX - 1):
        GG = p * NG + GB
        slots[GG]['s'].append(('BAR', p + 1))
        G = kdma((p + 3) % 4, 'p%d' % ((p + 3) % 4)) + vdma((p + 3) % 4, 'p%d' % ((p + 3) % 4))
        pos = GG + 2
        for g in G:
            while pos in slots and cap(pos) < len(g): pos += 1
            if pos not in slots: break
            slots[pos]['s'].append(('DMA', g, p + 1))
            pos += 3
    return dict(slots=slots, NG=NG, GB=GB)
```

```python
from asmlib import *
from k1 import *
from k1b import *

def gen_emit(P, info, T):
    e = P.e
    slots, GB = T['slots'], T['GB']
    vKD, vVD = info['vKD'], info['vVD']
    def valid(blk): return 0 <= blk[1] <= 15
    def emit_item_groups(g):
        for x in g:
            if isinstance(x, tuple): e(x[0], tag=x[1])
            else: e(x)
    def emit_range(G0, G1, zero_first=False, rawS0=False, skipv=None, skip_dma=False, skip_bar=False):
        for GG in range(G0, G1):
            s = slots[GG]; m = s['m']
            if valid(m['blk']):
                C = m['C']
                if zero_first and m['blk'] == ('F', 0) and m['ph'] == 4: C = '0'
                if rawS0 and m['ph'] == 1 and m['blk'] == ('F', 0) and m.get('ds') == 0: C = '0'
                e('v_mfma_f32_16x16x32_bf16 %s, %s, %s, %s' % (m['D'], m['A'], m['B'], C))
            for (t, blk) in s['l']:
                if valid(blk): e(t)
            for it in s['s']:
                if it[0] == 'BAR':
                    if skip_bar: continue
                    P.waitvm(['p%d' % (it[1] % 4)])
                    e('s_barrier')
                elif it[0] == 'DMA':
                    if not skip_dma: emit_item_groups(it[1])
            for (t, blk) in s['v']:
                if valid(blk) and not (skipv and skipv(GG, t, blk)): e(t)
    P.cur = P.blocks['k1_asetup']
    c0 = []
    for GG in range(-NG + GB, -NG + GB + 60):
        for it in slots[GG]['s']:
            if it[0] == 'DMA' and it[2] == 0: c0.append((GG, it[1]))
    assert len(c0) == 8, c0
    def emit_c0_early():
        for GG, g in c0:
            if GG < 0: emit_item_groups(g)
    emit_c0_early()

    P.block('k1_A')
    e('K1_A:')
    for GG in range(-NG + GB, 0):
        for (t, blk) in slots[GG]['l']:
            if blk == ('F', 0): e(t)
    deferred = []
    def skipv(GG, t, blk):
        if blk == ('F', 0) and GG < 40:
            deferred.append(t); return True
        return False
    emit_range(0, 40, rawS0=True, skipv=skipv)
    e('s_cmp_eq_u32 s%d, 1' % sGIVEN)
    e('s_cbranch_scc1 K1_AGIVEN')
    P.block('k1_Amax')
    R = range(5)
    def S(qt, i): return vSF + 8 * qt + i
    def N(qt, i): return vNM + 4 * qt + i
    for qt in R: e('v_max3_f32 v%d, v%d, v%d, v%d' % (N(qt, 0), S(qt, 0), S(qt, 1), S(qt, 2)))
    for qt in R: e('v_max3_f32 v%d, v%d, v%d, v%d' % (N(qt, 1), S(qt, 3), S(qt, 4), S(qt, 5)))
    for qt in R: e('v_max3_f32 v%d, v%d, v%d, v%d' % (N(qt, 0), N(qt, 0), S(qt, 6), S(qt, 7)))
    for qt in R: e('v_max_f32 v%d, v%d, v%d' % (N(qt, 0), N(qt, 0), N(qt, 1)))
    def xreduce_max():
        for sw in ('v_permlane32_swap_b32', 'v_permlane16_swap_b32'):
            for qt in R: e('v_mov_b32 v%d, v%d' % (N(qt, 1), N(qt, 0)))
            for qt in R: e('%s v%d, v%d' % (sw, N(qt, 0), N(qt, 1)))
            for qt in R: e('v_max_f32 v%d, v%d, v%d' % (N(qt, 0), N(qt, 0), N(qt, 1)))
        for qt in R: e('v_sub_f32 v%d, 0, v%d' % (N(qt, 0), N(qt, 0)))
        for i in range(1, 4):
            for qt in R: e('v_mov_b32 v%d, v%d' % (N(qt, i), N(qt, 0)))
    xreduce_max()
    P.block('k1_A2')
    e('K1_AGIVEN:')
    for i in range(8):
        for qt in R: e('v_add_f32 v%d, v%d, v%d' % (S(qt, i), N(qt, 0), S(qt, i)))
    for t in deferred: e(t)
    emit_range(40, GB, zero_first=True)
    P.block('k1_B')
    emit_range(GB, NG + GB, zero_first=True)
    e('s_mov_b32 s%d, 4' % sCNT)
    def text_of(G0, G1):
        save = P.cur; tmp = []; P.cur = tmp
        emit_range(G0, G1); P.cur = save
        return [i.text for i in tmp]
    for p in range(2, 12):
        assert text_of((p - 1) * NG + GB, p * NG + GB) == text_of((p + 3) * NG + GB, (p + 4) * NG + GB), p
    P.block('k1_L1')
    e('K1_L1:')
    emit_range(1 * NG + GB, 3 * NG + GB)
    e('s_sub_u32 s%d, s%d, 1' % (sCNT, sCNT))
    e('s_cmp_eq_u32 s%d, 0' % sCNT)
    e('s_cbranch_scc1 K1_T')
    P.block('k1_L2')
    emit_range(3 * NG + GB, 5 * NG + GB)
    e('s_branch K1_L1')
    P.block('k1_T')
    e('K1_T:')
    emit_range(15 * NG + GB, 16 * NG)
    emit_range(16 * NG, 16 * NG + 76, skip_dma=True)

    P.block('k1_E')
    e('s_mov_b64 s[62:63], 0')
    for qt in R:
        e('v_cmp_nlt_f32 vcc, v%d, v%d' % (vL + 4 * qt, 60)) if False else None
    e('v_mov_b32 v60, s%d' % sBIG)
    for qt in R:
        e('v_cmp_nlt_f32 vcc, v%d, v60' % (vL + 4 * qt))
        e('s_or_b64 s[62:63], s[62:63], vcc')
    e('s_cmp_lg_u64 s[62:63], 0')
    e('s_cselect_b32 s%d, 1, 0' % sT0)
    e('v_mov_b32 v61, s%d' % sT0)
    e('s_lshl_b32 s%d, s%d, 2' % (sT1, sW))
    e('s_add_u32 s%d, s%d, %d' % (sT1, sT1, XA + 16384))
    e('v_mov_b32 v62, s%d' % sT1)
    e('ds_write_b32 v62, v61')
    e('v_mov_b32 v60, v%d' % (vNM + 16))
    e('v_mov_b32 v61, v%d' % (vL + 16))
    e('s_lshl_b32 s%d, s%d, 9' % (sT1, sW))
    e('s_add_u32 s%d, s%d, %d' % (sT1, sT1, XA + 16384 + 256))
    e('v_lshlrev_b32 v62, 3, v2')
    e('v_add_u32 v62, s%d, v62' % sT1)
    e('ds_write_b64 v62, v[60:61]')
    e('s_xor_b32 s%d, s%d, 512' % (sT1, sT1))
    e('v_lshlrev_b32 v63, 3, v2')
    e('v_add_u32 v63, s%d, v63' % sT1)
    e('s_lshl_b32 s%d, s%d, 12' % (sT1, sW))
    e('s_add_u32 s%d, s%d, %d' % (sT1, sT1, XA))
    e('v_add_u32 v32, s%d, v7' % sT1)
    e('s_xor_b32 s%d, s%d, 4096' % (sT1, sT1))
    e('v_add_u32 v33, s%d, v7' % sT1)
    e('s_cmp_eq_u32 s%d, 1' % sPAR)
    e('s_cbranch_scc1 K1_E1')
    names = []
    for par in range(2):
        P.block('k1_E%d' % par)
        if par: e('K1_E1:')
        keep = range(4 * par, 4 * par + 4); send = range(4 * (1 - par), 4 * (1 - par) + 4)
        for i, dt in enumerate(send):
            e('ds_write_b128 v32, %s offset:%d' % (O(4, dt), i * 1024))
        for qt in range(4):
            e('v_rcp_f32 v%d, v%d' % (vNM + 4 * qt + 1, vL + 4 * qt))
        tb = 0
        for qt in range(4):
            rr = vNM + 4 * qt + 1
            for u in range(4):
                t = vSF + 8 * (tb % 8); d = vVR + 4 * (tb % 4); tb += 1
                for i in range(8):
                    e('v_accvgpr_read_b32 v%d, a%d' % (t + i, aO + 32 * qt + 8 * u + i))
                for i in range(8):
                    e('v_mul_f32 v%d, v%d, v%d' % (t + i, rr, t + i))
                for i in range(4):
                    e('v_cvt_pk_bf16_f32 v%d, v%d, v%d' % (d + i, t + 2 * i, t + 2 * i + 1))
                e('s_add_u32 s%d, s%d, s%d' % (sT0, sOT + qt, sOFB))
                e('s_add_u32 s%d, s%d, %d' % (sT0, sT0, u * 9216))
                e('buffer_store_dwordx4 %s, v7, %s, s%d offen' % (vr(d), srd(S_WS), sT0), tag='ost')
        e('s_waitcnt lgkmcnt(0)')
        e('s_barrier')
        pb = vSS
        for i in range(4):
            e('ds_read_b128 %s, v33 offset:%d' % (vr(pb + 4 * i), i * 1024))
        e('ds_read_b64 v[60:61], v63')
        e('v_mov_b32 v62, %d' % (XA + 16384))
        e('ds_read_b128 %s, v62' % vr(vSS + 16))
        e('v_or_b32 v%d, v%d, v%d' % (vSS + 16, vSS + 16, vSS + 17))
        e('v_or_b32 v%d, v%d, v%d' % (vSS + 18, vSS + 18, vSS + 19))
        e('v_or_b32 v%d, v%d, v%d' % (vSS + 16, vSS + 16, vSS + 18))
        e('v_readfirstlane_b32 s%d, v%d' % (sT0, vSS + 16))
        e('s_andn2_b32 s%d, s%d, s%d' % (sT0, sT0, sGIVEN))
        e('s_cmp_lg_u32 s%d, 0' % sT0)
        e('s_cbranch_scc1 K1_FB')
        P.block('k1_F%d' % par)
        nmo = vNM + 16; lo = vL + 16
        e('v_min_f32 v62, v60, v%d' % nmo)
        e('v_sub_f32 v63, v62, v%d' % nmo)
        e('v_sub_f32 v62, v62, v60')
        e('v_exp_f32 v63, v63')
        e('v_exp_f32 v62, v62')
        e('v_mul_f32 v61, v61, v62')
        e('v_fma_f32 v61, v%d, v63, v61' % lo)
        e('v_rcp_f32 v61, v61')
        e('v_mul_f32 v63, v63, v61')
        e('v_mul_f32 v62, v62, v61')
        for uu in range(2):
            t = vSF + 8 * uu; d = vVR + 4 * uu
            for i in range(8):
                e('v_accvgpr_read_b32 v%d, a%d' % (t + i, aO + 128 + 4 * keep[0] + 8 * uu + i))
            for i in range(8):
                e('v_mul_f32 v%d, v63, v%d' % (t + i, t + i))
            for i in range(8):
                e('v_fma_f32 v%d, v%d, v62, v%d' % (t + i, pb + 8 * uu + i, t + i))
            for i in range(4):
                e('v_cvt_pk_bf16_f32 v%d, v%d, v%d' % (d + i, t + 2 * i, t + 2 * i + 1))
            e('s_add_u32 s%d, s%d, s%d' % (sT0, sOT + 4, sOFB))
            e('s_add_u32 s%d, s%d, %d' % (sT0, sT0, (2 * par + uu) * 9216))
            e('buffer_store_dwordx4 %s, v7, %s, s%d offen' % (vr(d), srd(S_WS), sT0), tag='ost')
        if par == 0: e('s_branch K1_N')
    P.block('k1_N')
    e('K1_N:')
    e('s_add_u32 s%d, s%d, 1' % (sHEAD, sHEAD))
    e('s_cmp_eq_u32 s%d, 2' % sHEAD)
    e('s_cbranch_scc1 K1_DONE')
    e('s_mov_b32 s%d, 0' % sGIVEN)
    e('s_add_u32 s%d, s%d, %d' % (sOFB, sOFB, 4 * 9216))
    for i in range(80):
        e('v_accvgpr_read_b32 v%d, a%d' % (vQ + i, aQN + i))
    e('s_branch K1_A')

    P.block('k1_FB')
    e('K1_FB:')
    e('s_waitcnt vmcnt(0) lgkmcnt(0)')
    e('s_barrier')
    e('v_lshlrev_b32 v60, 8, v3')
    e('v_lshlrev_b32 v61, 4, v4')
    e('v_add_u32 v60, v60, v61')
    e('s_lshl_b32 s%d, s%d, 18' % (sT0, sHEAD))
    e('s_mov_b32 s%d, 64' % sCNT)
    for qt in R: e('v_mov_b32 v%d, 0xff800000' % N(qt, 0))
    P.block('k1_FBL')
    e('K1_FBL:')
    for ds in range(4):
        e('buffer_load_dwordx4 %s, v60, %s, s%d offen offset:%d' % (vr(vVR + 4 * ds), srd(S_K), sT0, ds * 64))
    for ds in range(4):
        for qt in R:
            D = vr(vSF + 8 * qt)
            e('v_mfma_f32_16x16x32_bf16 %s, %s, %s, %s' % (D, vr(vVR + 4 * ds), Qf(qt, ds), D if ds else '0'))
    for qt in R:
        e('v_max3_f32 v%d, v%d, v%d, v%d' % (N(qt, 0), N(qt, 0), S(qt, 0), S(qt, 1)))
    for qt in R:
        e('v_max3_f32 v%d, v%d, v%d, v%d' % (N(qt, 0), N(qt, 0), S(qt, 2), S(qt, 3)))
    e('s_add_u32 s%d, s%d, 4096' % (sT0, sT0))
    e('s_sub_u32 s%d, s%d, 1' % (sCNT, sCNT))
    e('s_cmp_lg_u32 s%d, 0' % sCNT)
    e('s_cbranch_scc1 K1_FBL')
    P.block('k1_FB2')
    xreduce_max()
    e('s_mov_b32 s%d, 1' % sGIVEN)
    e('s_lshl_b32 s%d, s%d, 18' % (sKO, sHEAD))
    def dma_period(ps):
        for i in range(4):
            if i == 0: e('s_add_u32 m0, s%d, %d' % (sMK, ps * 16384))
            e('buffer_load_dwordx4 v%d, %s, s%d offen offset:%d nt lds' % (vKD + i, srd(S_K), sKO, i * 1024), tag='p%d' % ps)
        for i in range(4):
            if i == 0: e('s_add_u32 m0, s%d, %d' % (sMK, 65536 + ps * 16384))
            e('buffer_load_dwordx4 v%d, %s, s%d offen offset:%d nt lds' % (vVD + i % 2, srd(S_V), sKO, i * 1024), tag='p%d' % ps)
        e('s_add_u32 s%d, s%d, 16384' % (sKO, sKO))
    for ps in range(2): dma_period(ps)
    emit_c0_early()
    P.waitvm(['p0'])
    e('s_barrier')
    e('s_branch K1_A')
    P.block('k1_end')
    e('K1_DONE:')
    e('s_endpgm')

    pre = ['k1_pre', 'k1_q0', 'k1_qloop', 'k1_qloop', 'k1_qtail', 'k1_fx']
    paths = []
    for par in range(2):
        head = ['k1_A', 'k1_Amax', 'k1_A2', 'k1_B', 'k1_L1', 'k1_L2', 'k1_L1', 'k1_L2', 'k1_L1', 'k1_T', 'k1_E', 'k1_E%d' % par]
        paths.append(pre + ['k1_fx%d' % par, 'k1_asetup'] + head + ['k1_F%d' % par, 'k1_N'] + head + ['k1_F%d' % par, 'k1_N'])
        paths.append(pre + ['k1_fx%d' % par, 'k1_asetup'] + head + ['k1_FB', 'k1_FBL', 'k1_FBL', 'k1_FB2', 'k1_A', 'k1_A2', 'k1_B', 'k1_L1', 'k1_T'])
    return paths
```

```python
from asmlib import *

WF_OFF = 0x2400000

def gen_k2(P, name='oproj_kernel'):
    P.block('k2_pre')
    e = P.e
    e('.p2align 8')
    e('.globl %s' % name)
    e('.type %s,@function' % name)
    e('%s:' % name)
    e('s_cmp_ge_u32 s2, 256')
    e('s_cbranch_scc1 K2_DONE')
    e('s_load_dwordx2 s[4:5], s[0:1], 96')
    e('s_load_dwordx2 s[6:7], s[0:1], 80')
    e('v_lshrrev_b32 v1, 6, v0')
    e('v_and_b32 v2, 63, v0')
    e('v_readfirstlane_b32 s20, v1')
    e('v_lshlrev_b32 v3, 4, v2')
    e('s_and_b32 s21, s2, 7')
    e('s_lshr_b32 s22, s2, 3')
    e('s_lshr_b32 s23, s21, 2')
    e('s_and_b32 s24, s21, 3')
    e('s_lshl_b32 s24, s24, 2')
    e('s_and_b32 s25, s22, 3')
    e('s_add_u32 s24, s24, s25')
    e('s_lshr_b32 s25, s22, 2')
    e('s_waitcnt lgkmcnt(0)')
    e('s_lshl_b32 s26, s23, 4')
    e('s_add_u32 s26, s26, s24')
    e('s_mul_i32 s26, s26, %d' % (128 * 9216))
    e('s_add_u32 s8, s4, s26')
    e('s_addc_u32 s9, s5, 0')
    e('s_mov_b32 s10, %d' % (128 * 9216))
    e('s_mov_b32 s11, 0x00020000')
    e('s_lshl_b32 s26, s23, 3')
    e('s_add_u32 s26, s26, s25')
    e('s_mul_i32 s26, s26, %d' % (128 * 5120))
    e('s_add_u32 s26, s26, %d' % WF_OFF)
    e('s_add_u32 s12, s4, s26')
    e('s_addc_u32 s13, s5, 0')
    e('s_mov_b32 s14, %d' % (128 * 5120))
    e('s_mov_b32 s15, 0x00020000')
    e('s_mov_b32 s16, s6')
    e('s_mov_b32 s17, s7')
    e('s_mov_b32 s18, %d' % (8 * 288 * 1280 * 2))
    e('s_mov_b32 s19, 0x00020000')
    e('s_mul_i32 s30, s20, 9216')
    e('s_mul_i32 s31, s20, 5120')
    ACC = 64
    def acc(t, qt):
        r = ACC + 4 * (t * 9 + qt); return 'v[%d:%d]' % (r, r + 3)
    def fA(st, t):
        r = st * 56 + 4 * t; return 'a[%d:%d]' % (r, r + 3)
    def fB(st, qt):
        r = st * 56 + 20 + 4 * qt; return 'a[%d:%d]' % (r, r + 3)
    def loads(st):
        L = []
        L.append(['buffer_load_dwordx4 %s, v3, s[12:15], s31 offen' % fA(st, 0)])
        L.append(['s_add_u32 s32, s30, 4096', 's_add_u32 s33, s30, 8192', 'buffer_load_dwordx4 %s, v3, s[8:11], s30 offen' % fB(st, 0)])
        for qt in range(1, 4):
            L.append(['buffer_load_dwordx4 %s, v3, s[8:11], s30 offen offset:%d' % (fB(st, qt), qt * 1024)])
        for qt in range(4, 8):
            L.append(['buffer_load_dwordx4 %s, v3, s[8:11], s32 offen offset:%d' % (fB(st, qt), (qt - 4) * 1024)])
        L.append(['buffer_load_dwordx4 %s, v3, s[8:11], s33 offen' % fB(st, 8)])
        for t in range(1, 4):
            L.append(['buffer_load_dwordx4 %s, v3, s[12:15], s31 offen offset:%d' % (fA(st, t), t * 1024)])
        L.append(['s_add_u32 s34, s31, 4096', 'buffer_load_dwordx4 %s, v3, s[12:15], s34 offen' % fA(st, 4),
                  's_add_u32 s30, s30, %d' % (4 * 9216), 's_add_u32 s31, s31, %d' % (4 * 5120)])
        return L
    for st in range(3):
        for grp in loads(st):
            for t in grp: e(t)
    for r in range(ACC, ACC + 180):
        e('v_mov_b32 v%d, 0' % r)
    e('s_mov_b32 s35, 8')
    P.block('k2_loop')
    e('K2_LOOP:')
    for st in range(4):
        L = loads((st + 3) % 4)
        g = 0; li = 0
        for t in range(5):
            for qt in range(9):
                e('v_mfma_f32_16x16x32_bf16 %s, %s, %s, %s' % (acc(t, qt), fA(st, t), fB(st, qt), acc(t, qt)))
                if g % 3 == 1 and li < len(L):
                    for x in L[li]: e(x)
                    li += 1
                g += 1
        assert li == len(L)
    e('s_sub_u32 s35, s35, 1')
    e('s_cmp_lg_u32 s35, 0')
    e('s_cbranch_scc1 K2_LOOP')
    P.block('k2_mid')
    e('s_waitcnt vmcnt(0)')
    units = {0: [('P', 0, q) for q in range(0, 5)] + [('S', 4, 0)],
             1: [('P', 0, q) for q in range(5, 9)] + [('P', 2, 0)] + [('S', 4, 1)],
             2: [('P', 2, q) for q in range(1, 5)] + [('S', 4, q) for q in (2, 3, 4)],
             3: [('P', 2, q) for q in range(5, 9)] + [('S', 4, q) for q in (5, 6, 7, 8)]}
    owner = {}
    for w, us in units.items():
        for (k, t, q) in us:
            owner[(t, q)] = w
            if k == 'P': owner[(t + 1, q)] = w
    assert len(owner) == 45
    e('v_and_b32 v4, 15, v2')
    e('v_lshrrev_b32 v5, 4, v2')
    e('s_mul_i32 s26, s24, 144')
    e('v_add_u32 v4, s26, v4')
    e('s_movk_i32 s27, 2560')
    e('v_mul_lo_u32 v4, v4, s27')
    e('s_mul_i32 s26, s23, 1280')
    e('s_mul_i32 s27, s25, 160')
    e('s_add_u32 s26, s26, s27')
    e('v_add_u32 v4, s26, v4')
    e('v_lshlrev_b32 v6, 4, v5')
    e('v_add_u32 v6, v4, v6')
    e('v_lshlrev_b32 v7, 3, v5')
    e('v_add_u32 v7, v4, v7')
    e('v_add_u32 v7, 128, v7')
    e('v_add_u32 v8, 0x10000, v3')
    e('v_add_u32 v9, 0x20000, v3')
    for w in range(1, 4):
        e('s_cmp_eq_u32 s20, %d' % w)
        e('s_cbranch_scc1 K2_W%d' % w)
    paths = []
    def ldsaddr(off):
        if off < 0x10000: return 'v3', off
        if off < 0x20000: return 'v8', off - 0x10000
        return 'v9', off - 0x20000
    for w in range(4):
        P.block('k2_w%d' % w)
        e('K2_W%d:' % w)
        for t in range(5):
            for qt in range(9):
                o = owner[(t, qt)]
                if o == w: continue
                idx = w if w < o else w - 1
                a, off = ldsaddr(((t * 9 + qt) * 3 + idx) * 1024)
                e('ds_write_b128 %s, %s offset:%d' % (a, acc(t, qt), off))
        e('s_waitcnt lgkmcnt(0)')
        e('s_barrier')
        tmp = 16
        slot = 0
        def sum_tile(t, qt):
            nonlocal slot
            base = tmp + 12 * (slot % 4); slot += 1
            for idx in range(3):
                a, off = ldsaddr(((t * 9 + qt) * 3 + idx) * 1024)
                e('ds_read_b128 v[%d:%d], %s offset:%d' % (base + 4 * idx, base + 4 * idx + 3, a, off))
            return base
        tiles = []
        for (k, t, q) in units[w]:
            tiles.append((k, t, q))
        pend = []
        def issue(u):
            k, t, q = u
            b0 = sum_tile(t, q)
            b1 = sum_tile(t + 1, q) if k == 'P' else None
            return (u, b0, b1)
        def finish(pu):
            (k, t, q), b0, b1 = pu
            for (tt, b) in ((t, b0), (t + 1, b1)):
                if b is None: continue
                r = ACC + 4 * (tt * 9 + q)
                for i in range(4):
                    e('v_add_f32 v%d, v%d, v%d' % (b + i, b + i, b + 4 + i))
                    e('v_add_f32 v%d, v%d, v%d' % (r + i, r + i, b + 8 + i))
                for i in range(4):
                    e('v_add_f32 v%d, v%d, v%d' % (r + i, r + i, b + i))
            r0 = ACC + 4 * (t * 9 + q)
            if k == 'P':
                r1 = ACC + 4 * ((t + 1) * 9 + q)
                e('v_cvt_pk_bf16_f32 v10, v%d, v%d' % (r0, r0 + 1))
                e('v_cvt_pk_bf16_f32 v11, v%d, v%d' % (r0 + 2, r0 + 3))
                e('v_cvt_pk_bf16_f32 v12, v%d, v%d' % (r1, r1 + 1))
                e('v_cvt_pk_bf16_f32 v13, v%d, v%d' % (r1 + 2, r1 + 3))
                e('s_mov_b32 s26, %d' % (q * 16 * 2560 + (t // 2) * 64))
                e('buffer_store_dwordx4 v[10:13], v6, s[16:19], s26 offen')
            else:
                e('v_cvt_pk_bf16_f32 v14, v%d, v%d' % (r0, r0 + 1))
                e('v_cvt_pk_bf16_f32 v15, v%d, v%d' % (r0 + 2, r0 + 3))
                e('s_mov_b32 s26, %d' % (q * 16 * 2560))
                e('buffer_store_dwordx2 v[14:15], v7, s[16:19], s26 offen')
        prev = None
        for u in tiles:
            cur = issue(u)
            if prev is not None: finish(prev)
            prev = cur
        finish(prev)
        e('s_endpgm')
        paths.append(['k2_pre', 'k2_loop', 'k2_loop', 'k2_mid', 'k2_w%d' % w])
    P.block('k2_end')
    e('K2_DONE:')
    e('s_endpgm')
    desc = '''.amdhsa_kernel %s
  .amdhsa_next_free_vgpr 512
  .amdhsa_next_free_sgpr 64
  .amdhsa_accum_offset 256
  .amdhsa_group_segment_fixed_size 0
  .amdhsa_kernarg_size 104
  .amdhsa_user_sgpr_count 2
  .amdhsa_user_sgpr_kernarg_segment_ptr 1
  .amdhsa_system_sgpr_workgroup_id_x 1
.end_amdhsa_kernel
''' % name
    return paths, desc
```

```python
import sys
from asmlib import *
import k1, k1b, k1c, k2

def main(out):
    P = Prog()
    info = k1.gen_k1(P)
    k1b.gen_fixup(P, info, None)
    T = k1b.gen_attn(P, info)
    paths = k1c.gen_emit(P, info, T)
    p2, d2 = k2.gen_k2(P)
    P.finalize(paths + p2, report=('-v' in sys.argv))
    for b in ('k1_qloop', 'k1_L1', 'k1_L2', 'k1_A2', 'k1_B', 'k1_T', 'k1_E0', 'k2_loop'):
        print(b, P.stats(b))
    ref = open('concat_heads__gqa_block_cached__mha_block_cached__near_ridge.s.ref').read()
    hdr = []
    for line in ref.splitlines():
        if line.startswith(';') and '@launch' not in line and 'Override' not in line and 'grid=ceil' not in line: hdr.append(line)
        if not line.startswith(';'): break
    txt = '\n'.join(hdr) + '\n'
    txt += '; @launch kernel=attn_kernel grid=(256,1,1) block=(256,1,1) lds=163840\n'
    txt += '; @launch kernel=oproj_kernel grid=(256,1,1) block=(256,1,1) lds=138240\n'
    txt += '.amdgcn_target "amdgcn-amd-amdhsa--gfx950"\n.text\n'
    txt += P.emit()
    txt += '.section .rodata,"a"\n.p2align 6\n'
    txt += '''.amdhsa_kernel attn_kernel
  .amdhsa_next_free_vgpr 512
  .amdhsa_next_free_sgpr 102
  .amdhsa_accum_offset 256
  .amdhsa_group_segment_fixed_size 0
  .amdhsa_kernarg_size 104
  .amdhsa_user_sgpr_count 2
  .amdhsa_user_sgpr_kernarg_segment_ptr 1
  .amdhsa_system_sgpr_workgroup_id_x 1
.end_amdhsa_kernel
.p2align 6
'''
    txt += d2
    open(out, 'w').write(txt)
    print('wrote', out, len(txt), 'bytes')

main(sys.argv[1])
```

```python
import re

REG_RE = re.compile(r'\b([vas])(\d+)\b|\b([vas])\[(\d+):(\d+)\]|\b(vcc|exec|m0|scc)\b')

def regs_of(tok):
    out = []
    for m in REG_RE.finditer(tok):
        if m.group(1):
            out.append(m.group(1) + m.group(2))
        elif m.group(3):
            for i in range(int(m.group(4)), int(m.group(5)) + 1):
                out.append(m.group(3) + str(i))
        else:
            out.append(m.group(6))
    return out

TRANS = ('v_exp_f32', 'v_log_f32', 'v_rcp_f32', 'v_rsq_f32', 'v_sqrt_f32', 'v_sin_f32', 'v_cos_f32')

class I:
    __slots__ = ('text', 'kind', 'rd', 'wr', 'lgkm', 'vm', 'nops', 'tag', 'need', 'op', 'srcC', 'dstD', 'comment', 'xrd')
    def __init__(self, text, tag=None, need=None):
        self.text = text
        self.tag = tag
        self.need = need
        self.lgkm = None
        self.vm = None
        self.nops = 0
        self.srcC = []
        self.dstD = []
        self.xrd = []
        self.parse()
    def parse(self):
        t = self.text.split(';')[0].strip()
        if t.endswith(':') or t.startswith('.') or t == '':
            self.kind = 'label'; self.rd = []; self.wr = []; self.op = ''; return
        sp = t.split(None, 1)
        op = sp[0]; self.op = op
        rest = sp[1] if len(sp) > 1 else ''
        ops = [x.strip() for x in rest.split(',')] if rest else []
        rd = []; wr = []
        if op.startswith('v_mfma'):
            self.kind = 'mfma'
            wr = regs_of(ops[0]); rd = regs_of(ops[1]) + regs_of(ops[2]) + regs_of(ops[3])
            self.srcC = regs_of(ops[3]); self.dstD = wr
        elif op.startswith('v_'):
            self.kind = 'trans' if op.replace('_e32', '').replace('_e64', '') in TRANS else 'valu'
            if op.startswith('v_permlane') and 'swap' in op:
                wr = regs_of(ops[0]) + regs_of(ops[1]); rd = list(wr)
            elif op.startswith('v_cmp'):
                wr = regs_of(ops[0]); rd = sum((regs_of(x) for x in ops[1:]), [])
                if op.startswith('v_cmpx'): wr = wr + ['exec']
            elif op.startswith(('v_add_co', 'v_sub_co', 'v_addc_co', 'v_subb_co', 'v_subrev_co')):
                wr = regs_of(ops[0]) + regs_of(ops[1]); rd = sum((regs_of(x) for x in ops[2:]), [])
            else:
                wr = regs_of(ops[0]); rd = sum((regs_of(x) for x in ops[1:]), [])
                if op.startswith(('v_fmac', 'v_dot2c', 'v_pk_fmac')): rd = rd + wr
                if op.startswith('v_cndmask') and len(ops) == 3: rd = rd + ['vcc']
        elif op.startswith('ds_'):
            self.kind = 'lds'
            if op.startswith(('ds_read', 'ds_bpermute', 'ds_permute', 'ds_swizzle')):
                wr = regs_of(ops[0]); rd = sum((regs_of(x) for x in ops[1:]), [])
            else:
                rd = sum((regs_of(x) for x in ops), [])
        elif op.startswith(('buffer_', 'global_')):
            self.kind = 'vmem'
            islds = re.search(r'\blds\b', rest) is not None
            if op.startswith(('buffer_load', 'global_load')) and not islds and '_lds_' not in op:
                wr = regs_of(ops[0]); rd = sum((regs_of(x) for x in ops[1:]), [])
            else:
                rd = sum((regs_of(x) for x in ops), [])
                if islds or '_lds_' in op: rd = rd + ['m0']
        elif op.startswith('s_'):
            self.kind = 'salu'
            if op in ('s_waitcnt', 's_barrier', 's_nop', 's_endpgm', 's_branch', 's_setprio', 's_sleep') or op.startswith('s_cbranch'):
                self.kind = 'ctl'
                if op in ('s_cbranch_vccz', 's_cbranch_vccnz'): rd = ['vcc']
                if op in ('s_cbranch_execz', 's_cbranch_execnz'): rd = ['exec']
            elif op.startswith('s_cmp') or op.startswith('s_bitcmp'):
                rd = sum((regs_of(x) for x in ops), [])
            elif op.startswith(('s_load', 's_memtime', 's_memrealtime', 's_buffer_load')):
                self.kind = 'smem'
                wr = regs_of(ops[0]); rd = sum((regs_of(x) for x in ops[1:]), [])
            else:
                wr = regs_of(ops[0]); rd = sum((regs_of(x) for x in ops[1:]), [])
                if 'saveexec' in op: wr = wr + ['exec']; rd = rd + ['exec']
        elif op == 'waitvm':
            self.kind = 'waitvm'
        else:
            raise ValueError('unknown op ' + t)
        self.rd = rd; self.wr = wr

class Prog:
    def __init__(self):
        self.blocks = {}
        self.order = []
        self.cur = None
    def block(self, name):
        self.cur = []
        self.blocks[name] = self.cur
        self.order.append(name)
        return self.cur
    def e(self, text, tag=None, need=None, xrd=None):
        for line in text.split('\n'):
            line = line.strip()
            abl = getattr(self, 'abl', ())
            if 'nodma' in abl and ' lds' in line and line.startswith('buffer_load'): continue
            if 'nobar' in abl and line == 's_barrier': continue
            if 'noadv' in abl and line.startswith(('s_add_u32 s41, s41', 's_add_u32 s42, s42')): continue
            if 'nox' in abl and line.startswith('buffer_load') and 's[8:11]' in line: continue
            if 'now' in abl and line.startswith('buffer_load') and 's[12:15]' in line: continue
            if 'nowait' in abl and line.startswith('buffer_load'): tag = None
            if 'nolds' in abl and line.startswith('ds_read'): continue
            if 'noexp' in abl and line.startswith(('v_exp', 'v_cvt_pk')): continue
            if line:
                self.cur.append(I(line, tag, need))
                if xrd: self.cur[-1].xrd = regs_of(xrd)
    def stamp(self, i):
        if getattr(self, 'prof', False):
            self.e('s_memtime s[%d:%d]' % (64 + 2 * i, 65 + 2 * i))
            self.e('s_waitcnt lgkmcnt(0)')
    def acc_begin(self):
        if getattr(self, 'prof2', False):
            self.e('s_memtime s[90:91]')
            self.e('s_waitcnt lgkmcnt(0)')
    def acc_end(self, k):
        if getattr(self, 'prof2', False):
            self.e('s_memtime s[92:93]')
            self.e('s_waitcnt lgkmcnt(0)')
            self.e('s_sub_u32 s92, s92, s90')
            self.e('s_add_u32 s%d, s%d, s92' % (100 + k, 100 + k))
    def waitvm(self, need):
        self.cur.append(I('waitvm', need=set(need)))

    def wait_pass(self, path):
        changed = False
        lq = []
        vq = []
        for bname in path:
            for ins in self.blocks[bname]:
                if ins.kind == 'label': continue
                need_l = None; need_v = None
                touched = set(ins.rd) | set(ins.wr) | set(ins.xrd)
                if ins.op == 's_waitcnt':
                    m = re.search(r'lgkmcnt\((\d+)\)', ins.text)
                    if m:
                        n = int(m.group(1)); lq = lq[len(lq) - n:] if n < len(lq) else lq
                        if n == 0: lq = []
                    m = re.search(r'vmcnt\((\d+)\)', ins.text)
                    if m:
                        n = int(m.group(1)); vq = vq[len(vq) - n:] if n < len(vq) else vq
                        if n == 0: vq = []
                    continue
                for idx, (o, w) in enumerate(lq):
                    if w & touched:
                        n = len(lq) - 1 - idx
                        if o.kind == 'smem' or any(x.kind == 'smem' for x, _ in lq): n = 0
                        need_l = n if need_l is None else min(need_l, n)
                for idx, (o, w) in enumerate(vq):
                    hit = bool(w & touched)
                    if ins.kind == 'waitvm' and o.tag in ins.need: hit = True
                    if hit:
                        n = len(vq) - 1 - idx
                        need_v = n if need_v is None else min(need_v, n)
                if need_l is not None:
                    need_l = min(need_l, 15)
                    if ins.lgkm is None or need_l < ins.lgkm:
                        ins.lgkm = need_l; changed = True
                if need_v is not None:
                    need_v = min(need_v, 63)
                    if ins.vm is None or need_v < ins.vm:
                        ins.vm = need_v; changed = True
                if ins.lgkm is not None:
                    n = ins.lgkm
                    lq = lq[len(lq) - n:] if 0 < n < len(lq) else ([] if n == 0 else lq)
                if ins.vm is not None:
                    n = ins.vm
                    vq = vq[len(vq) - n:] if 0 < n < len(vq) else ([] if n == 0 else vq)
                if ins.kind in ('lds', 'smem'):
                    lq.append((ins, set(ins.wr)))
                    assert len(lq) <= 64
                elif ins.kind == 'vmem':
                    vq.append((ins, set(ins.wr)))
        return changed

    def hazard_pass(self, path, report=False):
        changed = False
        hist = []
        pos = 0
        last = {}
        def req(cls, regs, dist):
            m = 0
            for r in regs:
                p = last.get((cls, r))
                if p is not None:
                    m = max(m, dist - (pos - p - 1))
            return m
        for bname in path:
            for ins in self.blocks[bname]:
                if ins.kind == 'label': continue
                pre = 1 if (ins.lgkm is not None or ins.vm is not None) else 0
                pos += pre + ins.nops
                if ins.kind == 'waitvm':
                    continue
                need = 0
                k = ins.kind
                vrd = [r for r in ins.rd if r[0] in 'va' and r != 'vcc']
                vwr = [r for r in ins.wr if r[0] in 'va' and r != 'vcc']
                srd = [r for r in ins.rd if r[0] == 's' or r in ('vcc', 'm0', 'exec')]
                if k == 'mfma':
                    need = max(need, req('valu_w', vrd, 2))
                    ab = [r for r in vrd if r not in ins.srcC]
                    need = max(need, req('mfma_w', ab, 8))
                    for r in ins.srcC:
                        p = last.get(('mfma_w', r))
                        if p is not None and last.get(('mfma_wD', r)) != tuple(ins.srcC):
                            need = max(need, 6 - (pos - p - 1))
                    need = max(need, req('valu_wexec', ['exec'], 4))
                elif k in ('valu', 'trans'):
                    need = max(need, req('mfma_w', vrd + vwr, 8))
                    need = max(need, req('mfma_c', vwr, 3))
                    if k == 'valu':
                        need = max(need, req('trans_w', vrd, 1))
                    if ins.op.startswith('v_permlane'):
                        need = max(need, req('valu_w', vrd, 2))
                    if 'dpp' in ins.text or 'row_' in ins.text:
                        need = max(need, req('valu_w', vrd, 2))
                    if ins.op.startswith(('v_readfirstlane', 'v_readlane')):
                        need = max(need, req('valu_w', vrd, 1))
                    need = max(need, req('valu_ws', srd + (['vcc'] if 'vcc' in ins.rd else []), 2))
                    need = max(need, req('store_d', vwr, 2))
                elif k in ('lds', 'vmem'):
                    need = max(need, req('mfma_w', vrd + vwr, 8))
                    need = max(need, req('valu_ws', srd, 5))
                    if 'm0' in ins.rd:
                        need = max(need, req('salu_w', ['m0'], 1))
                    need = max(need, req('store_d', vwr, 1))
                elif k in ('salu', 'ctl', 'smem'):
                    need = max(need, req('valu_ws', srd, 4))
                if need > 0:
                    ins.nops += need; pos += need; changed = True
                    if report: print('hazard nop', need, 'before', ins.text)
                if k in ('valu', 'trans'):
                    for r in vwr: last[('valu_w', r)] = pos
                    for r in ins.wr:
                        if r[0] == 's' or r == 'vcc': last[('valu_ws', r)] = pos
                        if r == 'exec': last[('valu_wexec', r)] = pos
                    if k == 'trans':
                        for r in vwr: last[('trans_w', r)] = pos
                    else:
                        for r in vwr: last.pop(('trans_w', r), None)
                    for r in vwr: last.pop(('mfma_w', r), None)
                elif k == 'mfma':
                    for r in ins.dstD:
                        last[('mfma_w', r)] = pos; last[('mfma_wD', r)] = tuple(ins.dstD)
                        last.pop(('valu_w', r), None)
                    for r in ins.srcC: last[('mfma_c', r)] = pos
                elif k == 'salu':
                    for r in ins.wr: last[('salu_w', r)] = pos
                elif k == 'vmem' and 'store' in ins.op and ('x4' in ins.op or 'x3' in ins.op):
                    for r in vrd: last[('store_d', r)] = pos
                elif k == 'lds' and ins.op in ('ds_write_b128', 'ds_write_b96'):
                    for r in vrd: last[('store_d', r)] = pos
                if ins.op == 's_nop':
                    pos += int(ins.text.split()[1], 0) + 1
                else:
                    pos += 1
        return changed

    def finalize(self, paths, report=False):
        for it in range(50):
            ch = False
            for p in paths: ch |= self.wait_pass(p)
            if not ch: break
        for it in range(50):
            ch = False
            for p in paths: ch |= self.hazard_pass(p, report)
            if not ch: break

    def emit(self):
        out = []
        for b in self.order:
            for ins in self.blocks[b]:
                w = []
                if ins.vm is not None: w.append('vmcnt(%d)' % ins.vm)
                if ins.lgkm is not None: w.append('lgkmcnt(%d)' % ins.lgkm)
                if w: out.append('  s_waitcnt ' + ' '.join(w))
                n = ins.nops
                while n > 0:
                    k = min(n, 16); out.append('  s_nop %d' % (k - 1)); n -= k
                if ins.kind == 'waitvm': continue
                out.append(ins.text if ins.kind == 'label' else '  ' + ins.text)
        return '\n'.join(out) + '\n'
    def est(self, name, verbose=False):
        tot = 0; cur = None; n = 0; gaps = []
        def flush():
            nonlocal tot, cur
            if cur is not None:
                c = max(16, 8 + cur); tot += c; gaps.append(c)
        extra = 0
        prevk = None
        for ins in self.blocks[name]:
            if ins.kind == 'label': continue
            c = 0
            if ins.vm is not None or ins.lgkm is not None: c += 4
            c += ins.nops
            if ins.kind == 'mfma':
                if cur is None: extra += c
                else: cur += c
                flush(); cur = 0; n += 1; prevk = 'mfma'
                continue
            if ins.kind == 'waitvm':
                pass
            elif ins.kind == 'trans': c += 8
            else: c += 4
            if ins.kind in ('lds', 'vmem') and prevk in ('valu', 'trans'): c += 4
            prevk = ins.kind
            if cur is None: extra += c
            else: cur += c
        flush()
        return n, tot + extra
    def stats(self, name):
        from collections import Counter
        c = Counter()
        for ins in self.blocks[name]:
            c[ins.kind] += 1
            if ins.vm is not None or ins.lgkm is not None: c['autowait'] += 1
            c['nops'] += ins.nops
        return dict(c)
```

```python
from asmlib import *
import math, struct

WF_OFF = 0x2400000
CSCALE = math.log2(math.e) / math.sqrt(128.0)
def f32bits(x): return struct.unpack('<I', struct.pack('<f', x))[0]

S_X, S_WQ, S_K, S_V, S_WS, S_WO = 8, 12, 16, 20, 24, 28
sW, sPAR, sP, sB, sHP = 32, 33, 34, 35, 36
sT0, sT1, sT2, sT3 = 37, 38, 39, 40
sXO, sWO_, sM4, sCNT, sM5, sWFO = 41, 42, 43, 44, 45, 46
sKO, sHEAD, sGIVEN, sOFB, sC, sBIG = 47, 48, 49, 50, 51, 52
sVO = 54
sOT = 56
def srd(b): return 's[%d:%d]' % (b, b + 3)
def vr(b, n=4): return 'v[%d:%d]' % (b, b + n - 1)
def ar(b, n=4): return 'a[%d:%d]' % (b, b + n - 1)

XB = 65536; XSLOT = 36864; WSLOT = 16384
vKD = 34
vVD = 38

def kdma(pslot, tag, soff=None):
    G = []
    for i in range(4):
        g = []
        if i == 0: g.append('s_add_u32 m0, s%d, %d' % (sM4, pslot * 16384))
        g.append(('buffer_load_dwordx4 v%d, %s, s%d offen offset:%d nt lds' % (vKD + i, srd(S_K), sKO, i * 1024), tag))
        G.append(g)
    G[-1].append('s_add_u32 s%d, s%d, 16384' % (sKO, sKO))
    return G
def vdma(pslot, tag):
    G = []
    for i in range(4):
        g = []
        if i == 0: g.append('s_add_u32 m0, s%d, %d' % (sM4, 65536 + pslot * 16384))
        g.append(('buffer_load_dwordx4 v%d, %s, s%d offen offset:%d nt lds' % (vVD + i % 2, srd(S_V), sVO, i * 1024), tag))
        G.append(g)
    G[-1].append('s_add_u32 s%d, s%d, 16384' % (sVO, sVO))
    return G

def gen_k1(P, name='attn_kernel'):
    e = P.e
    def emit_groups(G):
        for g in G:
            for x in g:
                if isinstance(x, tuple): e(x[0], tag=x[1])
                else: e(x)
    P.block('k1_pre')
    e('.p2align 8')
    e('.globl %s' % name)
    e('.type %s,@function' % name)
    e('%s:' % name)
    e('s_cmp_ge_u32 s2, 256')
    e('s_cbranch_scc1 K1_DONE')
    e('s_load_dwordx16 s[64:79], s[0:1], 0')
    e('s_load_dwordx8 s[80:87], s[0:1], 64')
    e('s_load_dwordx2 s[88:89], s[0:1], 96')
    e('v_lshrrev_b32 v1, 6, v0')
    e('v_and_b32 v2, 63, v0')
    e('v_readfirstlane_b32 s%d, v1' % sW)
    e('v_and_b32 v3, 15, v2')
    e('v_lshrrev_b32 v4, 4, v2')
    e('v_lshrrev_b32 v5, 2, v3')
    e('v_and_b32 v6, 3, v2')
    e('v_lshlrev_b32 v7, 4, v2')
    e('s_and_b32 s%d, s%d, 1' % (sPAR, sW))
    e('s_and_b32 s37, s2, 7')
    e('s_lshr_b32 s38, s2, 3')
    e('s_lshr_b32 s%d, s37, 2' % sP)
    e('s_and_b32 s39, s37, 2')
    e('s_lshl_b32 s39, s39, 1')
    e('s_and_b32 s40, s38, 3')
    e('s_add_u32 s%d, s39, s40' % sB)
    e('s_and_b32 s39, s37, 1')
    e('s_lshl_b32 s39, s39, 3')
    e('s_lshr_b32 s40, s38, 2')
    e('s_add_u32 s%d, s39, s40' % sHP)
    e('s_lshl_b32 s%d, s%d, 12' % (sM4, sW))
    vXD, vWD = 40, 45
    e('v_lshrrev_b32 v11, 3, v2')
    e('v_and_b32 v12, 7, v2')
    e('v_lshrrev_b32 v13, 1, v11')
    e('s_movk_i32 s37, 1280')
    e('v_mul_lo_u32 v11, v11, s37')
    e('s_mul_i32 s37, s%d, %d' % (sW, 72 * 1280))
    for i in range(4):
        e('s_add_u32 s38, s%d, %d' % (sPAR, i))
        e('s_and_b32 s38, s38, 1')
        e('s_lshl_b32 s38, s38, 2')
        e('v_or_b32 v14, s38, v13')
        e('v_xor_b32 v14, v14, v12')
        e('v_lshlrev_b32 v14, 4, v14')
        e('v_add_u32 v14, v14, v11')
        e('s_add_u32 s38, s37, %d' % (i * (8 * 1280 - 1024)))
        e('v_add_u32 v%d, s38, v14' % (vXD + i))
    e('s_mul_i32 s%d, s%d, 9216' % (sM5, sW))
    e('s_add_u32 s%d, s%d, %d' % (sM5, sM5, XB))
    e('v_lshrrev_b32 v12, 5, v2')
    e('v_and_b32 v13, 31, v2')
    e('s_lshl_b32 s37, s%d, 2' % sPAR)
    e('v_or_b32 v14, s37, v12')
    e('v_lshlrev_b32 v12, 13, v12')
    e('s_lshl_b32 s37, s%d, 16' % sW)
    e('v_add_u32 v12, s37, v12')
    for i in range(4):
        e('v_or_b32 v15, %d, v14' % (2 * (i & 1)))
        e('v_lshlrev_b32 v15, 1, v15')
        e('v_xor_b32 v15, v15, v13')
        e('v_lshlrev_b32 v15, 4, v15')
        e('v_add_u32 v15, v15, v12')
        e('v_add_u32 v%d, %d, v15' % (vWD + i, i * (16384 - 1024)))
    e('s_waitcnt lgkmcnt(0)')
    e('s_cmp_eq_u32 s%d, 0' % sP)
    e('s_cselect_b64 s[90:91], s[64:65], s[74:75]')
    e('s_cselect_b64 s[96:97], s[70:71], s[80:81]')
    e('s_cselect_b64 s[92:93], s[66:67], s[76:77]')
    e('s_cselect_b64 s[94:95], s[68:69], s[78:79]')
    e('s_mul_i32 s37, s%d, 368640' % sB)
    e('s_add_u32 s%d, s90, s37' % S_X)
    e('s_addc_u32 s%d, s91, 0' % (S_X + 1))
    e('s_mov_b32 s%d, 368640' % (S_X + 2))
    e('s_mov_b32 s%d, 0x00020000' % (S_X + 3))
    e('s_mov_b32 s%d, s96' % S_WQ)
    e('s_mov_b32 s%d, s97' % (S_WQ + 1))
    e('s_mov_b32 s%d, 5242880' % (S_WQ + 2))
    e('s_mov_b32 s%d, 0x00020000' % (S_WQ + 3))
    e('s_mov_b32 s%d, 0' % sXO)
    e('s_lshl_b32 s%d, s%d, 9' % (sWO_, sHP))
    xpol = P.opt.get('xpol', 'nt'); wpol = P.opt.get('wpol', 'nt')
    def wdma(slot, tag):
        G = []
        for i in range(4):
            g = []
            if i == 0: g.append('s_add_u32 m0, s%d, %d' % (sM4, slot * WSLOT))
            g.append(('buffer_load_dwordx4 v%d, %s, s%d offen offset:%d %s lds' % (vWD + i, srd(S_WQ), sWO_, i * 1024, wpol), tag))
            G.append(g)
        G[-1].append('s_add_u32 s%d, s%d, %d' % (sWO_, sWO_, 32 * 8192))
        return G
    def xdma(slot, tag):
        G = []
        for i in range(9):
            g = []
            if i % 4 == 0:
                g.append('s_add_u32 m0, s%d, %d' % (sM5, slot * XSLOT + i * 1024))
                if i: g.append('s_add_u32 s%d, s%d, %d' % (sT0, sXO, i * 8 * 1280))
            g.append(('buffer_load_dwordx4 v%d, %s, s%d offen offset:%d %s lds' % (vXD + i % 4, srd(S_X), sT0 if i >= 4 else sXO, (i % 4) * 1024, xpol), tag))
            G.append(g)
        G[-1].append('s_add_u32 s%d, s%d, 128' % (sXO, sXO))
        return G
    emit_groups(wdma(0, 'q0'))
    emit_groups(xdma(0, 'q0'))
    e('s_lshr_b32 s37, s2, 7')
    e('s_cmp_eq_u32 s37, 0')
    e('s_cselect_b64 s[98:99], s[72:73], s[82:83]')
    e('s_and_b32 s38, s2, 127')
    e('s_mul_i32 s39, s38, 40960')
    e('s_add_u32 s%d, s98, s39' % S_WO)
    e('s_addc_u32 s%d, s99, 0' % (S_WO + 1))
    e('s_mov_b32 s%d, 40960' % (S_WO + 2))
    e('s_mov_b32 s%d, 0x00020000' % (S_WO + 3))
    e('s_lshl_b32 s39, s37, 3')
    e('s_lshl_b32 s40, s%d, 1' % sW)
    e('s_add_u32 s39, s39, s40')
    e('s_lshl_b32 s39, s39, 7')
    e('s_add_u32 s39, s39, s38')
    e('s_mul_i32 s%d, s39, 5120' % sWFO)
    e('s_add_u32 s%d, s%d, %d' % (sWFO, sWFO, WF_OFF))
    WOS = 139264
    def wodma(half, tag):
        G = [['s_mul_i32 s%d, s%d, 5120' % (sT2, sW), 's_add_u32 m0, s%d, %d' % (sT2, WOS), 's_add_u32 s%d, s%d, %d' % (sT3, sT2, half * 20480)]]
        for i in range(4):
            G.append([('buffer_load_dwordx4 v7, %s, s%d offen offset:%d nt lds' % (srd(S_WO), sT3, i * 1024), tag)])
        G.append(['s_add_u32 m0, s%d, %d' % (sT2, WOS + 4096), 's_add_u32 s%d, s%d, 4096' % (sT3, sT3),
                  ('buffer_load_dwordx4 v7, %s, s%d offen nt lds' % (srd(S_WO), sT3), tag)])
        return G
    emit_groups(wodma(0, 'q1'))
    emit_groups(wdma(1, 'q1'))
    emit_groups(xdma(1, 'q2'))
    emit_groups(wdma(2, 'q2'))
    emit_groups(wdma(3, 'q3'))
    e('s_lshl_b32 s37, s%d, 5' % sB)
    e('s_lshl_b32 s38, s%d, 1' % sHP)
    e('s_add_u32 s37, s37, s38')
    e('s_lshl_b32 s37, s37, 18')
    for (S, src) in ((S_K, 92), (S_V, 94)):
        e('s_add_u32 s%d, s%d, s37' % (S, src))
        e('s_addc_u32 s%d, s%d, 0' % (S + 1, src + 1))
        e('s_mov_b32 s%d, 524288' % (S + 2))
        e('s_mov_b32 s%d, 0x00020000' % (S + 3))
    e('s_mov_b32 s%d, s88' % S_WS)
    e('s_mov_b32 s%d, s89' % (S_WS + 1))
    e('s_mov_b32 s%d, %d' % (S_WS + 2, WF_OFF + 10485760))
    e('s_mov_b32 s%d, 0x00020000' % (S_WS + 3))
    e('s_mov_b32 s%d, 0x%08x' % (sC, f32bits(CSCALE)))
    e('s_mov_b32 s%d, 0x%08x' % (sBIG, f32bits(2.0 ** 40)))
    e('v_lshlrev_b32 v12, 2, v4')
    e('v_add_u32 v12, v12, v5')
    e('s_movk_i32 s37, 1280')
    e('v_mul_lo_u32 v12, v12, s37')
    e('s_mul_i32 s37, s%d, 320' % sW)
    e('s_add_u32 s37, s37, %d' % WOS)
    e('v_add_u32 v12, s37, v12')
    e('v_lshlrev_b32 v13, 4, v6')
    e('v_add_u32 v8, v12, v13')
    e('v_lshlrev_b32 v14, 3, v6')
    e('v_add_u32 v9, v12, v14')
    WFR = 152
    def wo_reads(half):
        L = []
        for g2 in range(2):
            for t in range(5):
                r = WFR + 4 * (g2 * 5 + t) + 2 * half
                if t < 4: a = 'v8'; off = g2 * 160 + (t // 2) * 64 + (t % 2) * 8
                else: a = 'v9'; off = g2 * 160 + 128
                L.append('ds_read_b64_tr_b16 %s, %s offset:%d' % (ar(r, 2), a, off))
        return L
    def wo_stores():
        L = []
        for g2 in range(2):
            L.append('s_add_u32 s%d, s%d, %d' % (sT2, sWFO, g2 * 128 * 5120))
            L.append('s_add_u32 s%d, s%d, 4096' % (sT3, sT2))
            for t in range(5):
                r = WFR + 4 * (g2 * 5 + t)
                if t < 4: L.append(('buffer_store_dwordx4 %s, v7, %s, s%d offen offset:%d' % (ar(r), srd(S_WS), sT2, t * 1024), 'wfst'))
                else: L.append(('buffer_store_dwordx4 %s, v7, %s, s%d offen' % (ar(r), srd(S_WS), sT3), 'wfst'))
        return L
    if getattr(P, 'prof', False):
        e('s_mov_b32 s61, s88'); e('s_mov_b32 s55, s89')
        e('s_memrealtime s[96:97]'); e('s_waitcnt lgkmcnt(0)')
        e('s_mov_b32 s100, 0'); e('s_mov_b32 s101, 0')
    P.stamp(0)
    vXA, vXS = 16, 10
    vWX, vWY = 18, 26
    e('v_lshrrev_b32 v12, 1, v3')
    e('v_lshlrev_b32 v13, 7, v3')
    e('s_lshl_b32 s37, s%d, 13' % sW)
    e('s_add_u32 s37, s37, %d' % XB)
    e('s_lshr_b32 s38, s%d, 1' % sW)
    e('s_lshl_b32 s38, s38, 11')
    e('s_add_u32 s38, s38, %d' % (XB + 256 * 128))
    for ks in range(2):
        e('v_add_u32 v14, %d, v4' % (4 * ks))
        e('v_xor_b32 v14, v14, v12')
        e('v_lshlrev_b32 v14, 4, v14')
        e('v_add_u32 v14, v14, v13')
        e('v_add_u32 v%d, s37, v14' % (vXA + ks))
        e('v_add_u32 v%d, s38, v14' % (vXS + ks))
    e('v_and_b32 v12, 1, v4')
    e('v_lshlrev_b32 v12, 2, v12')
    e('v_or_b32 v12, v12, v5')
    e('v_lshlrev_b32 v13, 3, v4')
    e('v_add_u32 v13, v13, v5')
    e('v_lshlrev_b32 v13, 9, v13')
    e('v_lshlrev_b32 v14, 3, v6')
    e('v_add_u32 v13, v13, v14')
    e('s_lshl_b32 s38, s%d, 8' % sPAR)
    e('s_xor_b32 s39, s38, 256')
    for t0 in range(8):
        e('v_xor_b32 v14, %d, v12' % t0)
        e('v_lshlrev_b32 v14, 5, v14')
        e('v_add_u32 v14, v14, v13')
        e('v_add_u32 v%d, s38, v14' % (vWX + t0))
        e('v_add_u32 v%d, s39, v14' % (vWY + t0))
    e('v_lshlrev_b32 v12, 8, v4')
    e('v_add_u32 v12, s%d, v12' % sM4)
    for i in range(4):
        e('v_add_u32 v13, %d, v4' % (4 * i))
        e('v_xor_b32 v13, v13, v3')
        e('v_lshlrev_b32 v13, 4, v13')
        e('v_add_u32 v%d, v13, v12' % (vKD + i))
    for i in range(2):
        e('v_add_u32 v13, %d, v4' % (4 * i))
        e('v_lshlrev_b32 v13, 1, v13')
        e('v_xor_b32 v13, v13, v3')
        e('v_lshlrev_b32 v13, 4, v13')
        e('v_add_u32 v%d, v13, v12' % (vVD + i))
    e('s_mov_b32 s%d, 0' % sKO)
    e('s_mov_b32 s%d, 0' % sVO)
    e('v_lshlrev_b32 v49, 7, v2')
    e('s_lshl_b32 s37, s%d, 13' % sW)
    e('v_add_u32 v49, s37, v49')
    e('s_mov_b32 s53, %d' % (int(P.opt.get('pf0', 2)) * 16384))

    tiles = [('X', t0, q) for t0 in range(8) for q in range(5)] + [('Y', t0, q) for t0 in range(8) for q in range(4)]
    accmap = {}
    nv = 0; na = 0
    for tl in [t for t in tiles if t[0] == 'Y'] + [t for t in tiles if t[0] == 'X']:
        if nv < 48:
            accmap[tl] = ('v', 64 + 4 * nv); nv += 1
        else:
            accmap[tl] = ('a', 4 * na); na += 1
    def acc(g, t0, q):
        k, b = accmap[(g, t0, q)]; return '%s[%d:%d]' % (k, b, b + 3)
    ARING = 96
    BF = 112
    def bfrag(par, q): return ar(BF + 20 * par + 4 * q)
    def aslot(i): return ar(ARING + 4 * (i % 4))
    def a_loads(c, i):
        va = (vWX + i) if i < 8 else (vWY + i - 8)
        r = ARING + 4 * (i % 4); o = (c % 4) * WSLOT
        return ['ds_read_b64_tr_b16 %s, v%d offset:%d' % (ar(r, 2), va, o), 'ds_read_b64_tr_b16 %s, v%d offset:%d' % (ar(r + 2, 2), va, o + 2048)]
    def b_loads(c):
        par = c % 2; o = ((c // 2) % 2) * XSLOT
        L = ['ds_read_b128 %s, v%d offset:%d' % (bfrag(par, q), vXA + par, o + q * 2048) for q in range(4)]
        L.append('ds_read_b128 %s, v%d offset:%d' % (bfrag(par, 4), vXS + par, o))
        return L
    P.waitvm(['q0'])
    e('s_barrier')
    for x in b_loads(0): e(x)
    for i in range(4):
        for x in a_loads(0, i): e(x)
    P.stamp(1)

    seq = [(i, q) for i in range(16) for q in range(5 if i < 8 else 4)]
    NQ = len(seq)
    first = {}; lastuse = {}
    for g, (i, q) in enumerate(seq):
        first.setdefault(i, g); lastuse[i] = g
    GBQ = 58
    def emit_qchunk(c, dma_groups, need_tag, last=False, post=None):
        par = c % 2
        cap = [2] * NQ
        fill = [[] for _ in range(NQ)]
        for i in range(0, 16, 2):
            if first[i] > 0: cap[first[i] - 1] -= 1
        def place(g, items):
            for x in items:
                while cap[g] <= 0: g += 1
                fill[g].append(x); cap[g] -= 1
            return g
        for i in range(4, 16):
            place(lastuse[i - 4], a_loads(c, i))
        assert lastuse[11] < GBQ
        cap[GBQ] -= 2; fill[GBQ].append(('BAR',))
        if not last:
            g = place(GBQ + 1, b_loads(c + 1))
            for i in range(4):
                place(max(lastuse[12 + i], GBQ + 1), a_loads(c + 1, i))
        if post: place(GBQ + 1, post)
        g = 1
        for grp in dma_groups:
            for x in grp:
                while cap[min(g, NQ - 1)] <= 0 and g < NQ - 1: g += 1
                g = min(g, NQ - 1)
                fill[g].append(x); cap[g] -= 1
            g += int(P.opt.get('qsp', 3))
        for g, (i, q) in enumerate(seq):
            grp = 'X' if i < 8 else 'Y'
            a = acc(grp, i % 8, q)
            x = aslot(i + 1) if (i % 2 == 0 and g == first[i]) else None
            e('v_mfma_f32_16x16x32_bf16 %s, %s, %s, %s' % (a, aslot(i), bfrag(par, q), a if c != 0 else '0'), xrd=x)
            for x in fill[g]:
                if isinstance(x, tuple) and x[0] == 'BAR':
                    P.acc_begin()
                    P.waitvm([need_tag] if isinstance(need_tag, str) else need_tag)
                    e('s_waitcnt lgkmcnt(0)')
                    e('s_barrier')
                    P.acc_end(0)
                elif isinstance(x, tuple): e(x[0], tag=x[1])
                else: e(x)
    P.abl = P.opt.get('qabl', '').split(',')
    P.block('k1_q0')
    emit_qchunk(0, [], 'q1', post=wo_reads(0))
    e('s_mov_b32 s%d, 4' % sCNT)
    if P.opt.get('qst'): P.stamp(8)
    P.block('k1_qloop')
    e('K1_QLOOP:')
    for cc in range(1, 5):
        G = wdma((cc + 3) % 4, 'q%d' % ((cc + 3) % 4))
        if cc % 2 == 0:
            GX = xdma((cc // 2 + 1) % 2, 'q%d' % ((cc + 2) % 4))
            G = GX + G
        pf = int(P.opt.get('pf', 0))
        if pf:
            for k in range(2 * pf):
                if k % 4 == cc - 1 or (pf > 2 and False):
                    S = S_K if k % 2 == 0 else S_V
                    g = [('buffer_load_dword v50, v49, %s, s53 offen %s' % (srd(S), P.opt.get('pfpol', '')), 'pf')]
                    if k % 2 == 1: g.append('s_add_u32 s53, s53, 32768')
                    G = G + [g]
        emit_qchunk(cc, G, 'q%d' % ((cc + 1) % 4))
    e('s_sub_u32 s%d, s%d, 1' % (sCNT, sCNT))
    e('s_cmp_lg_u32 s%d, 0' % sCNT)
    e('s_cbranch_scc1 K1_QLOOP')
    P.abl = ()
    P.block('k1_qtail')
    if P.opt.get('qst'): P.stamp(9)
    emit_qchunk(17, wodma(1, 'q3') + kdma(0, 'p0'), 'q2')
    emit_qchunk(18, vdma(0, 'p0') + kdma(1, 'p1') + vdma(1, 'p1'), 'q3')
    emit_qchunk(19, kdma(2, 'p2') if int(P.opt.get('kahead', 3)) == 3 else [], 'none', last=True, post=None)
    if P.opt.get('qst'): P.stamp(10)
    W1 = wo_reads(1)
    for x in W1: e(x)
    for x in wo_stores():
        if isinstance(x, tuple): e(x[0], tag=x[1])
        else: e(x)
    P.stamp(2)
    return dict(accmap=accmap)
```

```python
from asmlib import *
from k1 import *

vQ = 64
vSF = 144
vSS = 184
vNM = 216
vL = 236
vVR = 40
vONE = 56
vKF, vKS = 8, 12
vVF, vVS = 16, 24
aO = 0
aQN = 160
aKR = 240

def Qf(qt, ds): return vr(vQ + 16 * qt + 4 * ds)
def QN(qt, ds): return aQN + 16 * qt + 4 * ds
def O(qt, dt): return ar(aO + 32 * qt + 4 * dt)
def NM(qt): return vr(vNM + 4 * qt)
def Lr(qt): return vr(vL + 4 * qt)
def Sreg(kind, qt): return (vSF if kind == 'F' else vSS) + 8 * qt

NG = 153
XA = 131072
XF = 49152

def gen_fixup(P, info, paths_prefix):
    e = P.e
    accmap = info['accmap']
    names = []
    P.block('k1_fx')
    e('s_cmp_eq_u32 s%d, 1' % sPAR)
    e('s_cbranch_scc1 K1_FX1')
    for par in range(2):
        P.block('k1_fx%d' % par)
        if par == 1: e('K1_FX1:')
        def src(hd, ds, q, which):
            grp = 'X' if hd == par else 'Y'
            return accmap[(grp, 2 * ds + which, q)]
        tmp = [40, 44, 48, 52, 56, 60]
        tcount = [0]
        def make_frag(hd, ds, q):
            A = src(hd, ds, q, 0); B = src(hd, ds, q, 1)
            regs = []
            for (k, b) in (A, B):
                if k == 'a':
                    t = tmp[tcount[0] % 6]; tcount[0] += 1
                    for i in range(4): e('v_accvgpr_read_b32 v%d, a%d' % (t + i, b + i))
                    regs.append(t)
                else:
                    regs.append(b)
            for rb in regs:
                for i in range(4): e('v_mul_f32 v%d, s%d, v%d' % (rb + i, sC, rb + i))
            d = tmp[tcount[0] % 6]; tcount[0] += 1
            e('v_cvt_pk_bf16_f32 v%d, v%d, v%d' % (d + 0, regs[0], regs[0] + 1))
            e('v_cvt_pk_bf16_f32 v%d, v%d, v%d' % (d + 1, regs[0] + 2, regs[0] + 3))
            e('v_cvt_pk_bf16_f32 v%d, v%d, v%d' % (d + 2, regs[1], regs[1] + 1))
            e('v_cvt_pk_bf16_f32 v%d, v%d, v%d' % (d + 3, regs[1] + 2, regs[1] + 3))
            e('v_permlane32_swap_b32 v%d, v%d' % (d + 0, d + 2))
            e('v_permlane32_swap_b32 v%d, v%d' % (d + 1, d + 3))
            e('v_permlane16_swap_b32 v%d, v%d' % (d + 0, d + 2))
            e('v_permlane16_swap_b32 v%d, v%d' % (d + 1, d + 3))
            return d
        def stage0(q, ds): return 96 + 16 * q + 4 * ds
        e('s_lshl_b32 s%d, s%d, 12' % (sT0, sW))
        e('s_add_u32 s%d, s%d, %d' % (sT0, sT0, XF))
        e('v_add_u32 v32, s%d, v7' % sT0)
        for ds in range(4):
            d = make_frag(par, ds, 4)
            e('ds_write_b128 v32, %s offset:%d' % (vr(d), ds * 1024))
        for hd in (1, 0):
            for q in range(4):
                for ds in range(4):
                    d = make_frag(hd, ds, q)
                    dst = QN(q, ds) if hd == 1 else stage0(q, ds)
                    for i in range(4): e('v_accvgpr_write_b32 a%d, v%d' % (dst + i, d + i))
        e('s_waitcnt lgkmcnt(0)')
        e('s_barrier')
        e('s_and_b32 s%d, s%d, 2' % (sT0, sW))
        e('s_lshl_b32 s%d, s%d, 12' % (sT0, sT0))
        e('s_add_u32 s%d, s%d, %d' % (sT0, sT0, XF))
        e('v_add_u32 v32, s%d, v7' % sT0)
        for ds in range(4):
            e('ds_read_b128 %s, v32 offset:%d' % (Qf(4, ds), ds * 1024))
            e('ds_read_b128 %s, v32 offset:%d' % (ar(QN(4, ds)), 4096 + ds * 1024))
        for q in range(4):
            for ds in range(4):
                for i in range(4):
                    e('v_accvgpr_read_b32 v%d, a%d' % (vQ + 16 * q + 4 * ds + i, stage0(q, ds) + i))
        if par == 0: e('s_branch K1_ATT')
        names.append('k1_fx%d' % par)
    return names

def gen_attn(P, info, dump=None):
    e = P.e
    P.block('k1_asetup')
    e('K1_ATT:')
    e('s_lshl_b32 s%d, s%d, 13' % (sT0, sPAR))
    e('s_xor_b32 s%d, s%d, 8192' % (sT1, sT0))
    e('v_lshlrev_b32 v60, 8, v3')
    for ds in range(4):
        e('v_add_u32 v61, %d, v4' % (4 * ds))
        e('v_xor_b32 v61, v61, v3')
        e('v_lshlrev_b32 v61, 4, v61')
        e('v_add_u32 v61, v61, v60')
        e('v_add_u32 v%d, s%d, v61' % (vKF + ds, sT0))
        e('v_add_u32 v%d, s%d, v61' % (vKS + ds, sT1))
    e('v_lshlrev_b32 v60, 2, v4')
    e('v_add_u32 v60, v60, v5')
    e('v_and_b32 v62, 7, v60')
    e('v_lshlrev_b32 v60, 8, v60')
    e('v_lshlrev_b32 v61, 3, v6')
    e('v_add_u32 v60, v60, v61')
    e('s_add_u32 s%d, s%d, 65536' % (sT0, sT0))
    e('s_add_u32 s%d, s%d, 65536' % (sT1, sT1))
    for dt in range(8):
        e('v_xor_b32 v61, %d, v62' % dt)
        e('v_lshlrev_b32 v61, 5, v61')
        e('v_add_u32 v61, v61, v60')
        e('v_add_u32 v%d, s%d, v61' % (vVF + dt, sT0))
        e('v_add_u32 v%d, s%d, v61' % (vVS + dt, sT1))
    for i in range(4): e('v_mov_b32 v%d, 0x3f803f80' % (vONE + i))
    for qt in range(5):
        if qt < 4:
            e('s_lshl_b32 s%d, s%d, 2' % (sT0, sW)); e('s_add_u32 s%d, s%d, %d' % (sT0, sT0, qt))
        else:
            e('s_lshr_b32 s%d, s%d, 1' % (sT0, sW)); e('s_add_u32 s%d, s%d, 16' % (sT0, sT0))
        e('s_cmp_ge_u32 s%d, 9' % sT0)
        e('s_cselect_b32 s%d, 1, 0' % sT1)
        e('s_mul_i32 s%d, s%d, 9' % (sT2, sT1))
        e('s_sub_u32 s%d, s%d, s%d' % (sT0, sT0, sT2))
        e('s_lshl_b32 s%d, s%d, 4' % (sT2, sP))
        e('s_lshl_b32 s%d, s%d, 1' % (sT3, sB))
        e('s_add_u32 s%d, s%d, s%d' % (sT2, sT2, sT3))
        e('s_add_u32 s%d, s%d, s%d' % (sT2, sT2, sT1))
        e('s_mul_i32 s%d, s%d, %d' % (sT2, sT2, 128 * 9216))
        e('s_lshl_b32 s%d, s%d, 10' % (sT0, sT0))
        e('s_add_u32 s%d, s%d, s%d' % (sOT + qt, sT2, sT0))
    e('s_lshl_b32 s%d, s%d, 3' % (sT0, sHP))
    e('s_mul_i32 s%d, s%d, 9216' % (sOFB, sT0))
    e('s_mov_b32 s%d, 0' % sHEAD)
    e('s_mov_b32 s%d, 0' % sGIVEN)
    P.waitvm(['p0'])
    e('s_waitcnt lgkmcnt(0)')
    e('s_barrier')

    GB = 128
    def mfmas(p):
        M = []
        ps = p % 4
        for f in range(8):
            kt, ds = f // 4, f % 4
            for qt in range(5):
                D = vr(Sreg('F', qt) + 4 * kt)
                C = D if ds else NM(qt)
                M.append(dict(ph=1, blk=('F', p), D=D, A=ar(aKR + 4 * (f % 4)), B=Qf(qt, ds), C=C, kf=f, qt=qt, ds=ds))
        for qt in range(4):
            M.append(dict(ph=2, blk=('S', p - 1), D=Lr(qt), A=vr(vONE), B=vr(Sreg('S', qt)), C=Lr(qt), qt=qt, l=True))
        for dt in range(8):
            for qt in range(4):
                M.append(dict(ph=2, blk=('S', p - 1), D=O(qt, dt), A=vr(vVR + 4 * (dt % 4)), B=vr(Sreg('S', qt)), C=O(qt, dt), vf=dt, qt=qt))
        for f in range(8):
            kt, ds = f // 4, f % 4
            for qt in range(4):
                D = vr(Sreg('S', qt) + 4 * kt)
                C = D if ds else NM(qt)
                M.append(dict(ph=3, blk=('S', p), D=D, A=ar(aKR + 4 * (f % 4)), B=Qf(qt, ds), C=C, kf=f, qt=qt, ds=ds))
        for qt in range(5):
            M.append(dict(ph=4, blk=('F', p), D=Lr(qt), A=vr(vONE), B=vr(Sreg('F', qt)), C=Lr(qt), qt=qt, l=True))
        for dt in range(8):
            for qt in range(5):
                M.append(dict(ph=4, blk=('F', p), D=O(qt, dt), A=vr(vVR + 4 * (dt % 4)), B=vr(Sreg('F', qt)), C=O(qt, dt), vf=dt, qt=qt))
        assert len(M) == NG
        return M
    PH0 = {1: 0, 2: 40, 3: 76, 4: 108}
    def fillers(p):
        F = []
        ps = p % 4
        def sm(kind, nq, g0):
            k = 0
            for kt in range(2):
                for qt in range(nq):
                    b = Sreg(kind, qt)
                    for i in range(4):
                        g = g0 + 2 * k
                        r = b + 4 * kt + i
                        F.append((g, 1, 'v_exp_f32 v%d, v%d' % (r, r), (kind, p)))
                        if i % 2 == 1:
                            F.append((g + 1, 2, 'v_cvt_pk_bf16_f32 v%d, v%d, v%d' % (b + 2 * kt + i // 2, r - 1, r), (kind, p)))
                        k += 1
        sm('F', 5, 24)
        sm('S', 4, 104)
        return F
    def kload(kind, p, f):
        kt, ds = f // 4, f % 4
        va = (vKF if kind == 'F' else vKS) + ds
        return ['ds_read_b128 %s, v%d offset:%d' % (ar(aKR + 4 * (f % 4)), va, (p % 4) * 16384 + kt * 4096)]
    def vload(kind, p, dt):
        va = (vVF if kind == 'F' else vVS) + dt
        r = vVR + 4 * (dt % 4)
        return ['ds_read_b64_tr_b16 %s, v%d offset:%d' % (vr(r, 2), va, (p % 4) * 16384),
                'ds_read_b64_tr_b16 %s, v%d offset:%d' % (vr(r + 2, 2), va, (p % 4) * 16384 + 4096)]

    PMIN, PMAX = -1, 17
    slots = {}
    for p in range(PMIN, PMAX):
        for g, m in enumerate(mfmas(p)):
            slots[p * NG + g] = dict(m=m, v=[], l=[], s=[], p=p, g=g)
    for p in range(PMIN, PMAX):
        for (g, prio, text, blk) in fillers(p):
            GG = p * NG + g
            if GG in slots: slots[GG]['v'].append((text, blk))
    def cap(GG):
        s = slots[GG]
        used = sum(2 if t.startswith('v_exp') else 1 for t, _ in s['v']) + len(s['l']) + sum(len(x[1]) if x[0] == 'DMA' else 2 for x in s['s'])
        return 2 - used
    loads = []
    for p in range(PMIN, PMAX):
        base = p * NG
        for f in range(8): loads.append(dict(t='K', blk=('F', p), f=f, use=base + 5 * f, last=base + 5 * f + 4, per=p))
        for f in range(8): loads.append(dict(t='V', blk=('S', p - 1), f=f, use=base + 44 + 4 * f, last=base + 44 + 4 * f + 3, per=p - 1))
        for f in range(8): loads.append(dict(t='K', blk=('S', p), f=f, use=base + 76 + 4 * f, last=base + 76 + 4 * f + 3, per=p))
        for f in range(8): loads.append(dict(t='V', blk=('F', p), f=f, use=base + 113 + 5 * f, last=base + 113 + 5 * f + 4, per=p))
    byring = {'K': [x for x in loads if x['t'] == 'K'], 'V': [x for x in loads if x['t'] == 'V']}
    for ring in byring.values():
        for i, x in enumerate(ring):
            free = ring[i - 4]['last'] if i >= 4 else PMIN * NG
            bar = (x['per'] - 1) * NG + GB + 1
            x['early'] = max(free, bar)
    loads.sort(key=lambda x: x['use'])
    LA_MAX = 40
    for x in loads:
        ops = kload(x['blk'][0], x['blk'][1], x['f']) if x['t'] == 'K' else vload(x['blk'][0], x['blk'][1], x['f'])
        GG = max(x['early'], x['use'] - LA_MAX)
        for op in ops:
            while GG in slots and cap(GG) <= 0: GG += 1
            if GG not in slots: break
            slots[GG]['l'].append((op, x['blk']))
            x.setdefault('at', []).append(GG)
        if 'at' in x and x['use'] - x['at'][-1] < 6 and 2 <= x['blk'][1] <= 8:
            print('WARN short lookahead', x)
    for p in range(PMIN, PMAX - 1):
        GG = p * NG + GB
        slots[GG]['s'].append(('BAR', p + 1))
        ka = int(P.opt.get('kahead', 3)); sp = int(P.opt.get('dsp', 1))
        GV = vdma((p + 3) % 4, 'p%d' % ((p + 3) % 4)); GK = kdma((p + 1 + ka) % 4, 'p%d' % ((p + 1 + ka) % 4))
        G = GV + GK
        pos = GG + 2
        for g in G:
            p2 = pos
            while p2 in slots and cap(p2) < len(g) and p2 < pos + 6: p2 += 1
            if p2 in slots and cap(p2) < len(g):
                p2 = pos
                while p2 in slots and cap(p2) < 1: p2 += 1
            pos = p2
            if pos not in slots: break
            slots[pos]['s'].append(('DMA', g, p + 1))
            pos += sp
    return dict(slots=slots, NG=NG, GB=GB)
```

```python
from asmlib import *
from k1 import *
from k1b import *

def gen_emit(P, info, T):
    e = P.e
    slots, GB = T['slots'], T['GB']
    def valid(blk): return 0 <= blk[1] <= 15
    def emit_item_groups(g):
        for x in g:
            if isinstance(x, tuple): e(x[0], tag=x[1])
            else: e(x)
    def emit_range(G0, G1, zero_first=False, rawS0=False, skipv=None, skip_dma=False, skip_bar=False):
        for GG in range(G0, G1):
            s = slots[GG]; m = s['m']
            if valid(m['blk']):
                C = m['C']
                if zero_first and m['blk'] == ('F', 0) and m['ph'] == 4: C = '0'
                if rawS0 and m['ph'] == 1 and m['blk'] == ('F', 0) and m.get('ds') == 0: C = '0'
                e('v_mfma_f32_16x16x32_bf16 %s, %s, %s, %s' % (m['D'], m['A'], m['B'], C))
            for (t, blk) in s['l']:
                if valid(blk): e(t)
            for it in s['s']:
                if it[0] == 'BAR':
                    if skip_bar: continue
                    P.acc_begin()
                    P.waitvm(['p%d' % (it[1] % 4)])
                    e('s_barrier')
                    P.acc_end(1)
                elif it[0] == 'DMA':
                    if not skip_dma: emit_item_groups(it[1])
            for (t, blk) in s['v']:
                if valid(blk) and not (skipv and skipv(GG, t, blk)): e(t)
    P.cur = P.blocks['k1_asetup']
    c0 = []
    for GG in range(-NG + GB, GB):
        for it in slots[GG]['s']:
            if it[0] == 'DMA' and it[2] == 0: c0.append((GG, it[1]))
    assert len(c0) == 8, c0
    def emit_c0_early():
        for GG, g in c0:
            if GG < 0: emit_item_groups(g)
    emit_c0_early()

    P.stamp(3)
    P.block('k1_A')
    e('K1_A:')
    for GG in range(-NG + GB, 0):
        for (t, blk) in slots[GG]['l']:
            if blk == ('F', 0): e(t)
    deferred = []
    def skipv(GG, t, blk):
        if blk == ('F', 0) and GG < 40:
            deferred.append(t); return True
        return False
    emit_range(0, 40, rawS0=True, skipv=skipv)
    e('s_cmp_eq_u32 s%d, 1' % sGIVEN)
    e('s_cbranch_scc1 K1_AGIVEN')
    P.block('k1_Amax')
    R = range(5)
    def S(qt, i): return vSF + 8 * qt + i
    def N(qt, i): return vNM + 4 * qt + i
    for qt in R: e('v_max3_f32 v%d, v%d, v%d, v%d' % (N(qt, 0), S(qt, 0), S(qt, 1), S(qt, 2)))
    for qt in R: e('v_max3_f32 v%d, v%d, v%d, v%d' % (N(qt, 1), S(qt, 3), S(qt, 4), S(qt, 5)))
    for qt in R: e('v_max3_f32 v%d, v%d, v%d, v%d' % (N(qt, 0), N(qt, 0), S(qt, 6), S(qt, 7)))
    for qt in R: e('v_max_f32 v%d, v%d, v%d' % (N(qt, 0), N(qt, 0), N(qt, 1)))
    def xreduce_max():
        for sw in ('v_permlane32_swap_b32', 'v_permlane16_swap_b32'):
            for qt in R: e('v_mov_b32 v%d, v%d' % (N(qt, 1), N(qt, 0)))
            for qt in R: e('%s v%d, v%d' % (sw, N(qt, 0), N(qt, 1)))
            for qt in R: e('v_max_f32 v%d, v%d, v%d' % (N(qt, 0), N(qt, 0), N(qt, 1)))
        for qt in R: e('v_sub_f32 v%d, 0, v%d' % (N(qt, 0), N(qt, 0)))
        for i in range(1, 4):
            for qt in R: e('v_mov_b32 v%d, v%d' % (N(qt, i), N(qt, 0)))
    xreduce_max()
    P.block('k1_A2')
    e('K1_AGIVEN:')
    for i in range(8):
        for qt in R: e('v_add_f32 v%d, v%d, v%d' % (S(qt, i), N(qt, 0), S(qt, i)))
    for t in deferred: e(t)
    emit_range(40, GB, zero_first=True)
    P.block('k1_B')
    P.stamp(4)
    emit_range(GB, NG + GB, zero_first=True)
    e('s_mov_b32 s%d, 4' % sCNT)
    def text_of(G0, G1):
        save = P.cur; tmp = []; P.cur = tmp
        emit_range(G0, G1); P.cur = save
        return [i.text for i in tmp]
    for p in range(2, 12):
        assert text_of((p - 1) * NG + GB, p * NG + GB) == text_of((p + 3) * NG + GB, (p + 4) * NG + GB), p
    P.abl = P.opt.get('aabl', '').split(',')
    P.block('k1_L1')
    e('K1_L1:')
    emit_range(1 * NG + GB, 3 * NG + GB)
    e('s_sub_u32 s%d, s%d, 1' % (sCNT, sCNT))
    e('s_cmp_eq_u32 s%d, 0' % sCNT)
    e('s_cbranch_scc1 K1_T')
    P.block('k1_L2')
    emit_range(3 * NG + GB, 5 * NG + GB)
    e('s_branch K1_L1')
    P.abl = ()
    P.block('k1_T')
    e('K1_T:')
    P.stamp(5)
    emit_range(15 * NG + GB, 16 * NG)
    emit_range(16 * NG, 16 * NG + 76, skip_dma=True)
    assert all(GG < GB for GG, _ in c0)

    P.block('k1_E')
    P.stamp(6)
    e('s_mov_b64 s[62:63], 0')
    for qt in R:
        e('v_cmp_nlt_f32 vcc, v%d, v%d' % (vL + 4 * qt, 60)) if False else None
    e('v_mov_b32 v60, s%d' % sBIG)
    for qt in R:
        e('v_cmp_nlt_f32 vcc, v%d, v60' % (vL + 4 * qt))
        e('s_or_b64 s[62:63], s[62:63], vcc')
    e('s_cmp_lg_u64 s[62:63], 0')
    e('s_cselect_b32 s%d, 1, 0' % sT0)
    e('v_mov_b32 v61, s%d' % sT0)
    e('s_lshl_b32 s%d, s%d, 2' % (sT1, sW))
    e('s_add_u32 s%d, s%d, %d' % (sT1, sT1, XA + 16384))
    e('v_mov_b32 v62, s%d' % sT1)
    e('ds_write_b32 v62, v61')
    e('v_mov_b32 v60, v%d' % (vNM + 16))
    e('v_mov_b32 v61, v%d' % (vL + 16))
    e('s_lshl_b32 s%d, s%d, 9' % (sT1, sW))
    e('s_add_u32 s%d, s%d, %d' % (sT1, sT1, XA + 16384 + 256))
    e('v_lshlrev_b32 v62, 3, v2')
    e('v_add_u32 v62, s%d, v62' % sT1)
    e('ds_write_b64 v62, v[60:61]')
    e('s_xor_b32 s%d, s%d, 512' % (sT1, sT1))
    e('v_lshlrev_b32 v63, 3, v2')
    e('v_add_u32 v63, s%d, v63' % sT1)
    e('s_lshl_b32 s%d, s%d, 12' % (sT1, sW))
    e('s_add_u32 s%d, s%d, %d' % (sT1, sT1, XA))
    e('v_add_u32 v32, s%d, v7' % sT1)
    e('s_xor_b32 s%d, s%d, 4096' % (sT1, sT1))
    e('v_add_u32 v33, s%d, v7' % sT1)
    e('s_cmp_eq_u32 s%d, 1' % sPAR)
    e('s_cbranch_scc1 K1_E1')
    names = []
    for par in range(2):
        P.block('k1_E%d' % par)
        if par: e('K1_E1:')
        keep = range(4 * par, 4 * par + 4); send = range(4 * (1 - par), 4 * (1 - par) + 4)
        for i, dt in enumerate(send):
            e('ds_write_b128 v32, %s offset:%d' % (O(4, dt), i * 1024))
        for qt in range(4):
            e('v_rcp_f32 v%d, v%d' % (vNM + 4 * qt + 1, vL + 4 * qt))
        tb = 0
        for qt in range(4):
            rr = vNM + 4 * qt + 1
            for u in range(4):
                t = vSF + 8 * (tb % 8); d = vVR + 4 * (tb % 4); tb += 1
                for i in range(8):
                    e('v_accvgpr_read_b32 v%d, a%d' % (t + i, aO + 32 * qt + 8 * u + i))
                for i in range(8):
                    e('v_mul_f32 v%d, v%d, v%d' % (t + i, rr, t + i))
                for i in range(4):
                    e('v_cvt_pk_bf16_f32 v%d, v%d, v%d' % (d + i, t + 2 * i, t + 2 * i + 1))
                e('s_add_u32 s%d, s%d, s%d' % (sT0, sOT + qt, sOFB))
                e('s_add_u32 s%d, s%d, %d' % (sT0, sT0, u * 9216))
                e('buffer_store_dwordx4 %s, v7, %s, s%d offen' % (vr(d), srd(S_WS), sT0), tag='ost')
        e('s_waitcnt lgkmcnt(0)')
        e('s_barrier')
        pb = vSS
        for i in range(4):
            e('ds_read_b128 %s, v33 offset:%d' % (vr(pb + 4 * i), i * 1024))
        e('ds_read_b64 v[60:61], v63')
        e('v_mov_b32 v62, %d' % (XA + 16384))
        e('ds_read_b128 %s, v62' % vr(vSS + 16))
        e('v_or_b32 v%d, v%d, v%d' % (vSS + 16, vSS + 16, vSS + 17))
        e('v_or_b32 v%d, v%d, v%d' % (vSS + 18, vSS + 18, vSS + 19))
        e('v_or_b32 v%d, v%d, v%d' % (vSS + 16, vSS + 16, vSS + 18))
        e('v_readfirstlane_b32 s%d, v%d' % (sT0, vSS + 16))
        e('s_andn2_b32 s%d, s%d, s%d' % (sT0, sT0, sGIVEN))
        e('s_cmp_lg_u32 s%d, 0' % sT0)
        e('s_cbranch_scc1 K1_FB')
        P.block('k1_F%d' % par)
        nmo = vNM + 16; lo = vL + 16
        e('v_min_f32 v62, v60, v%d' % nmo)
        e('v_sub_f32 v63, v62, v%d' % nmo)
        e('v_sub_f32 v62, v62, v60')
        e('v_exp_f32 v63, v63')
        e('v_exp_f32 v62, v62')
        e('v_mul_f32 v61, v61, v62')
        e('v_fma_f32 v61, v%d, v63, v61' % lo)
        e('v_rcp_f32 v61, v61')
        e('v_mul_f32 v63, v63, v61')
        e('v_mul_f32 v62, v62, v61')
        for uu in range(2):
            t = vSF + 8 * uu; d = vVR + 4 * uu
            for i in range(8):
                e('v_accvgpr_read_b32 v%d, a%d' % (t + i, aO + 128 + 4 * keep[0] + 8 * uu + i))
            for i in range(8):
                e('v_mul_f32 v%d, v63, v%d' % (t + i, t + i))
            for i in range(8):
                e('v_fma_f32 v%d, v%d, v62, v%d' % (t + i, pb + 8 * uu + i, t + i))
            for i in range(4):
                e('v_cvt_pk_bf16_f32 v%d, v%d, v%d' % (d + i, t + 2 * i, t + 2 * i + 1))
            e('s_add_u32 s%d, s%d, s%d' % (sT0, sOT + 4, sOFB))
            e('s_add_u32 s%d, s%d, %d' % (sT0, sT0, (2 * par + uu) * 9216))
            e('buffer_store_dwordx4 %s, v7, %s, s%d offen' % (vr(d), srd(S_WS), sT0), tag='ost')
        if par == 0: e('s_branch K1_N')
    P.block('k1_N')
    e('K1_N:')
    P.stamp(7)
    e('s_add_u32 s%d, s%d, 1' % (sHEAD, sHEAD))
    e('s_cmp_eq_u32 s%d, 2' % sHEAD)
    e('s_cbranch_scc1 K1_FIN')
    if getattr(P, 'prof', False) and not P.opt.get('qst'):
        for i in range(4):
            e('s_mov_b64 s[%d:%d], s[%d:%d]' % (64 + 2 * (8 + i), 65 + 2 * (8 + i), 64 + 2 * (4 + i), 65 + 2 * (4 + i)))
    e('s_mov_b32 s%d, 0' % sGIVEN)
    e('s_add_u32 s%d, s%d, %d' % (sOFB, sOFB, 4 * 9216))
    for i in range(80):
        e('v_accvgpr_read_b32 v%d, a%d' % (vQ + i, aQN + i))
    e('s_branch K1_A')

    P.block('k1_FB')
    e('K1_FB:')
    e('s_waitcnt vmcnt(0) lgkmcnt(0)')
    e('s_barrier')
    e('v_lshlrev_b32 v60, 8, v3')
    e('v_lshlrev_b32 v61, 4, v4')
    e('v_add_u32 v60, v60, v61')
    e('s_lshl_b32 s%d, s%d, 18' % (sT0, sHEAD))
    e('s_mov_b32 s%d, 64' % sCNT)
    for qt in R: e('v_mov_b32 v%d, 0xff800000' % N(qt, 0))
    P.block('k1_FBL')
    e('K1_FBL:')
    for ds in range(4):
        e('buffer_load_dwordx4 %s, v60, %s, s%d offen offset:%d' % (vr(vVR + 4 * ds), srd(S_K), sT0, ds * 64))
    for ds in range(4):
        for qt in R:
            D = vr(vSF + 8 * qt)
            e('v_mfma_f32_16x16x32_bf16 %s, %s, %s, %s' % (D, vr(vVR + 4 * ds), Qf(qt, ds), D if ds else '0'))
    for qt in R:
        e('v_max3_f32 v%d, v%d, v%d, v%d' % (N(qt, 0), N(qt, 0), S(qt, 0), S(qt, 1)))
    for qt in R:
        e('v_max3_f32 v%d, v%d, v%d, v%d' % (N(qt, 0), N(qt, 0), S(qt, 2), S(qt, 3)))
    e('s_add_u32 s%d, s%d, 4096' % (sT0, sT0))
    e('s_sub_u32 s%d, s%d, 1' % (sCNT, sCNT))
    e('s_cmp_lg_u32 s%d, 0' % sCNT)
    e('s_cbranch_scc1 K1_FBL')
    P.block('k1_FB2')
    xreduce_max()
    e('s_mov_b32 s%d, 1' % sGIVEN)
    e('s_lshl_b32 s%d, s%d, 18' % (sKO, sHEAD))
    e('s_lshl_b32 s%d, s%d, 18' % (sVO, sHEAD))
    for G in (kdma(0, 'p0'), vdma(0, 'p0'), kdma(1, 'p1'), vdma(1, 'p1')) + ((kdma(2, 'p2'),) if int(P.opt.get('kahead', 3)) == 3 else ()):
        for g in G: emit_item_groups(g)
    emit_c0_early()
    P.waitvm(['p0'])
    e('s_barrier')
    e('s_branch K1_A')
    P.block('k1_end')
    e('K1_FIN:')
    if getattr(P, 'prof', False):
        e('s_memrealtime s[98:99]')
        e('s_waitcnt lgkmcnt(0)')
        for i in range(16):
            src = (64 + 2 * i) if i < 12 else {12: 96, 13: 98, 14: 100, 15: 101}[i]
            e('v_mov_b32 v%d, s%d' % (64 + i, src))
        e('s_lshl_b32 s37, s2, 2')
        e('s_add_u32 s37, s37, s%d' % sW)
        e('s_lshl_b32 s37, s37, 6')
        e('v_mov_b32 v60, s37')
        e('s_add_u32 s8, s61, 0x4000000')
        e('s_addc_u32 s9, s55, 0')
        e('s_mov_b32 s10, 0x100000')
        e('s_mov_b32 s11, 0x00020000')
        e('v_cmp_eq_u32 vcc, 0, v2')
        e('s_and_saveexec_b64 s[62:63], vcc')
        e('s_cbranch_execz K1_DONE')
        for i in range(4):
            e('buffer_store_dwordx4 v[%d:%d], v60, s[8:11], 0 offen offset:%d' % (64 + 4 * i, 67 + 4 * i, 16 * i))
    e('K1_DONE:')
    e('s_endpgm')

    pre = ['k1_pre', 'k1_q0', 'k1_qloop', 'k1_qloop', 'k1_qtail', 'k1_fx']
    paths = []
    for par in range(2):
        head = ['k1_A', 'k1_Amax', 'k1_A2', 'k1_B', 'k1_L1', 'k1_L2', 'k1_L1', 'k1_L2', 'k1_L1', 'k1_T', 'k1_E', 'k1_E%d' % par]
        paths.append(pre + ['k1_fx%d' % par, 'k1_asetup'] + head + ['k1_F%d' % par, 'k1_N'] + head + ['k1_F%d' % par, 'k1_N'])
        paths.append(pre + ['k1_fx%d' % par, 'k1_asetup'] + head + ['k1_FB', 'k1_FBL', 'k1_FBL', 'k1_FB2', 'k1_A', 'k1_A2', 'k1_B', 'k1_L1', 'k1_T'])
    return paths
```

```python
from asmlib import *

WF_OFF = 0x2400000

def gen_k2(P, name='oproj_kernel'):
    P.block('k2_pre')
    e = P.e
    e('.p2align 8')
    e('.globl %s' % name)
    e('.type %s,@function' % name)
    e('%s:' % name)
    e('s_cmp_ge_u32 s2, 256')
    e('s_cbranch_scc1 K2_DONE')
    e('s_load_dwordx2 s[4:5], s[0:1], 96')
    e('s_load_dwordx2 s[6:7], s[0:1], 80')
    e('v_lshrrev_b32 v1, 6, v0')
    e('v_and_b32 v2, 63, v0')
    e('v_readfirstlane_b32 s20, v1')
    e('v_lshlrev_b32 v3, 4, v2')
    e('s_and_b32 s21, s2, 7')
    e('s_lshr_b32 s22, s2, 3')
    e('s_lshr_b32 s23, s21, 2')
    e('s_and_b32 s24, s21, 3')
    e('s_lshl_b32 s24, s24, 2')
    e('s_and_b32 s25, s22, 3')
    e('s_add_u32 s24, s24, s25')
    e('s_lshr_b32 s25, s22, 2')
    e('s_waitcnt lgkmcnt(0)')
    e('s_lshl_b32 s26, s23, 4')
    e('s_add_u32 s26, s26, s24')
    e('s_mul_i32 s26, s26, %d' % (128 * 9216))
    e('s_add_u32 s8, s4, s26')
    e('s_addc_u32 s9, s5, 0')
    e('s_mov_b32 s10, %d' % (128 * 9216))
    e('s_mov_b32 s11, 0x00020000')
    e('s_lshl_b32 s26, s23, 3')
    e('s_add_u32 s26, s26, s25')
    e('s_mul_i32 s26, s26, %d' % (128 * 5120))
    e('s_add_u32 s26, s26, %d' % WF_OFF)
    e('s_add_u32 s12, s4, s26')
    e('s_addc_u32 s13, s5, 0')
    e('s_mov_b32 s14, %d' % (128 * 5120))
    e('s_mov_b32 s15, 0x00020000')
    e('s_mov_b32 s16, s6')
    e('s_mov_b32 s17, s7')
    e('s_mov_b32 s18, %d' % (8 * 288 * 1280 * 2))
    e('s_mov_b32 s19, 0x00020000')
    if getattr(P,'prof',False): e('s_memtime s[40:41]'); e('s_memrealtime s[48:49]'); e('s_waitcnt lgkmcnt(0)')
    e('s_mul_i32 s30, s20, 9216')
    e('s_mul_i32 s31, s20, 5120')
    ACC = 64
    def acc(t, qt):
        r = ACC + 4 * (t * 9 + qt); return 'v[%d:%d]' % (r, r + 3)
    def fA(st, t):
        r = st * 56 + 4 * t; return 'a[%d:%d]' % (r, r + 3)
    def fB(st, qt):
        r = st * 56 + 20 + 4 * qt; return 'a[%d:%d]' % (r, r + 3)
    def loads(st):
        L = []
        L.append(['buffer_load_dwordx4 %s, v3, s[12:15], s31 offen' % fA(st, 0)])
        L.append(['s_add_u32 s32, s30, 4096', 's_add_u32 s33, s30, 8192', 'buffer_load_dwordx4 %s, v3, s[8:11], s30 offen' % fB(st, 0)])
        for qt in range(1, 4):
            L.append(['buffer_load_dwordx4 %s, v3, s[8:11], s30 offen offset:%d' % (fB(st, qt), qt * 1024)])
        for qt in range(4, 8):
            L.append(['buffer_load_dwordx4 %s, v3, s[8:11], s32 offen offset:%d' % (fB(st, qt), (qt - 4) * 1024)])
        L.append(['buffer_load_dwordx4 %s, v3, s[8:11], s33 offen' % fB(st, 8)])
        for t in range(1, 4):
            L.append(['buffer_load_dwordx4 %s, v3, s[12:15], s31 offen offset:%d' % (fA(st, t), t * 1024)])
        L.append(['s_add_u32 s34, s31, 4096', 'buffer_load_dwordx4 %s, v3, s[12:15], s34 offen' % fA(st, 4),
                  's_add_u32 s30, s30, %d' % (4 * 9216), 's_add_u32 s31, s31, %d' % (4 * 5120)])
        return L
    for st in range(3):
        for grp in loads(st):
            for t in grp: e(t)
    for r in range(ACC, ACC + 180):
        e('v_mov_b32 v%d, 0' % r)
    e('s_mov_b32 s35, 8')
    if getattr(P,'prof',False): e('s_memtime s[42:43]'); e('s_waitcnt lgkmcnt(0)')
    P.block('k2_loop')
    e('K2_LOOP:')
    for st in range(4):
        L = loads((st + 3) % 4)
        g = 0; li = 0
        for t in range(5):
            for qt in range(9):
                e('v_mfma_f32_16x16x32_bf16 %s, %s, %s, %s' % (acc(t, qt), fA(st, t), fB(st, qt), acc(t, qt)))
                if g % 3 == 1 and li < len(L):
                    for x in L[li]: e(x)
                    li += 1
                g += 1
        assert li == len(L)
    e('s_sub_u32 s35, s35, 1')
    e('s_cmp_lg_u32 s35, 0')
    e('s_cbranch_scc1 K2_LOOP')
    P.block('k2_mid')
    if getattr(P,'prof',False): e('s_memtime s[44:45]'); e('s_waitcnt lgkmcnt(0)')
    e('s_waitcnt vmcnt(0)')
    units = {0: [('P', 0, q) for q in range(0, 5)] + [('S', 4, 0)],
             1: [('P', 0, q) for q in range(5, 9)] + [('P', 2, 0)] + [('S', 4, 1)],
             2: [('P', 2, q) for q in range(1, 5)] + [('S', 4, q) for q in (2, 3, 4)],
             3: [('P', 2, q) for q in range(5, 9)] + [('S', 4, q) for q in (5, 6, 7, 8)]}
    owner = {}
    for w, us in units.items():
        for (k, t, q) in us:
            owner[(t, q)] = w
            if k == 'P': owner[(t + 1, q)] = w
    assert len(owner) == 45
    e('v_and_b32 v4, 15, v2')
    e('v_lshrrev_b32 v5, 4, v2')
    e('s_mul_i32 s26, s24, 144')
    e('v_add_u32 v4, s26, v4')
    e('s_movk_i32 s27, 2560')
    e('v_mul_lo_u32 v4, v4, s27')
    e('s_mul_i32 s26, s23, 1280')
    e('s_mul_i32 s27, s25, 160')
    e('s_add_u32 s26, s26, s27')
    e('v_add_u32 v4, s26, v4')
    e('v_lshlrev_b32 v6, 4, v5')
    e('v_add_u32 v6, v4, v6')
    e('v_lshlrev_b32 v7, 3, v5')
    e('v_add_u32 v7, v4, v7')
    e('v_add_u32 v7, 128, v7')
    e('v_add_u32 v8, 0x10000, v3')
    e('v_add_u32 v9, 0x20000, v3')
    for w in range(1, 4):
        e('s_cmp_eq_u32 s20, %d' % w)
        e('s_cbranch_scc1 K2_W%d' % w)
    paths = []
    def ldsaddr(off):
        if off < 0x10000: return 'v3', off
        if off < 0x20000: return 'v8', off - 0x10000
        return 'v9', off - 0x20000
    for w in range(4):
        P.block('k2_w%d' % w)
        e('K2_W%d:' % w)
        for t in range(5):
            for qt in range(9):
                o = owner[(t, qt)]
                if o == w: continue
                idx = w if w < o else w - 1
                a, off = ldsaddr(((t * 9 + qt) * 3 + idx) * 1024)
                e('ds_write_b128 %s, %s offset:%d' % (a, acc(t, qt), off))
        e('s_waitcnt lgkmcnt(0)')
        e('s_barrier')
        tmp = 16
        slot = 0
        def sum_tile(t, qt):
            nonlocal slot
            base = tmp + 12 * (slot % 4); slot += 1
            for idx in range(3):
                a, off = ldsaddr(((t * 9 + qt) * 3 + idx) * 1024)
                e('ds_read_b128 v[%d:%d], %s offset:%d' % (base + 4 * idx, base + 4 * idx + 3, a, off))
            return base
        tiles = []
        for (k, t, q) in units[w]:
            tiles.append((k, t, q))
        pend = []
        def issue(u):
            k, t, q = u
            b0 = sum_tile(t, q)
            b1 = sum_tile(t + 1, q) if k == 'P' else None
            return (u, b0, b1)
        def finish(pu):
            (k, t, q), b0, b1 = pu
            for (tt, b) in ((t, b0), (t + 1, b1)):
                if b is None: continue
                r = ACC + 4 * (tt * 9 + q)
                for i in range(4):
                    e('v_add_f32 v%d, v%d, v%d' % (b + i, b + i, b + 4 + i))
                    e('v_add_f32 v%d, v%d, v%d' % (r + i, r + i, b + 8 + i))
                for i in range(4):
                    e('v_add_f32 v%d, v%d, v%d' % (r + i, r + i, b + i))
            r0 = ACC + 4 * (t * 9 + q)
            if k == 'P':
                r1 = ACC + 4 * ((t + 1) * 9 + q)
                e('v_cvt_pk_bf16_f32 v10, v%d, v%d' % (r0, r0 + 1))
                e('v_cvt_pk_bf16_f32 v11, v%d, v%d' % (r0 + 2, r0 + 3))
                e('v_cvt_pk_bf16_f32 v12, v%d, v%d' % (r1, r1 + 1))
                e('v_cvt_pk_bf16_f32 v13, v%d, v%d' % (r1 + 2, r1 + 3))
                e('s_mov_b32 s26, %d' % (q * 16 * 2560 + (t // 2) * 64))
                e('buffer_store_dwordx4 v[10:13], v6, s[16:19], s26 offen')
            else:
                e('v_cvt_pk_bf16_f32 v14, v%d, v%d' % (r0, r0 + 1))
                e('v_cvt_pk_bf16_f32 v15, v%d, v%d' % (r0 + 2, r0 + 3))
                e('s_mov_b32 s26, %d' % (q * 16 * 2560))
                e('buffer_store_dwordx2 v[14:15], v7, s[16:19], s26 offen')
        prev = None
        for u in tiles:
            cur = issue(u)
            if prev is not None: finish(prev)
            prev = cur
        finish(prev)
        if getattr(P,'prof',False):
            e('s_memtime s[46:47]'); e('s_memrealtime s[50:51]'); e('s_waitcnt lgkmcnt(0)')
            for i, sr in enumerate((40, 42, 44, 46, 48, 50)): e('v_mov_b32 v%d, s%d' % (16 + i, sr))
            e('s_lshl_b32 s37, s2, 2'); e('s_add_u32 s37, s37, s20'); e('s_lshl_b32 s37, s37, 6'); e('v_mov_b32 v10, s37')
            e('s_add_u32 s8, s4, 0x4100000'); e('s_addc_u32 s9, s5, 0'); e('s_mov_b32 s10, 0x100000')
            e('v_cmp_eq_u32 vcc, 0, v2'); e('s_and_saveexec_b64 s[62:63], vcc'); e('s_cbranch_execz K2_DONE')
            e('buffer_store_dwordx4 v[16:19], v10, s[8:11], 0 offen'); e('buffer_store_dwordx4 v[20:23], v10, s[8:11], 0 offen offset:16')
        e('s_endpgm')
        paths.append(['k2_pre', 'k2_loop', 'k2_loop', 'k2_mid', 'k2_w%d' % w])
    P.block('k2_end')
    e('K2_DONE:')
    e('s_endpgm')
    desc = '''.amdhsa_kernel %s
  .amdhsa_next_free_vgpr 512
  .amdhsa_next_free_sgpr 64
  .amdhsa_accum_offset 256
  .amdhsa_group_segment_fixed_size 0
  .amdhsa_kernarg_size 104
  .amdhsa_user_sgpr_count 2
  .amdhsa_user_sgpr_kernarg_segment_ptr 1
  .amdhsa_system_sgpr_workgroup_id_x 1
.end_amdhsa_kernel
''' % name
    return paths, desc
```

```python
import sys
from asmlib import *
import k1, k1b, k1c, k2

def main(out):
    P = Prog()
    P.prof = '-prof' in sys.argv or '-prof2' in sys.argv
    P.prof2 = '-prof2' in sys.argv
    P.opt = dict(a.split('=') for a in sys.argv[2:] if '=' in a)
    info = k1.gen_k1(P)
    k1b.gen_fixup(P, info, None)
    T = k1b.gen_attn(P, info)
    paths = k1c.gen_emit(P, info, T)
    p2, d2 = k2.gen_k2(P)
    P.finalize(paths + p2, report=('-v' in sys.argv))
    for b in ('k1_qloop', 'k1_L1', 'k1_L2', 'k1_A2', 'k1_B', 'k1_T', 'k1_E0', 'k2_loop'):
        print(b, P.stats(b), 'est', P.est(b))
    ref = open('concat_heads__gqa_block_cached__mha_block_cached__near_ridge.s.ref').read()
    hdr = []
    for line in ref.splitlines():
        if line.startswith(';') and '@launch' not in line and 'Override' not in line and 'grid=ceil' not in line: hdr.append(line)
        if not line.startswith(';'): break
    txt = '\n'.join(hdr) + '\n'
    txt += '; @launch kernel=attn_kernel grid=(256,1,1) block=(256,1,1) lds=163840\n'
    txt += '; @launch kernel=oproj_kernel grid=(256,1,1) block=(256,1,1) lds=138240\n'
    txt += '.amdgcn_target "amdgcn-amd-amdhsa--gfx950"\n.text\n'
    txt += P.emit()
    txt += '.section .rodata,"a"\n.p2align 6\n'
    txt += '''.amdhsa_kernel attn_kernel
  .amdhsa_next_free_vgpr 512
  .amdhsa_next_free_sgpr 102
  .amdhsa_accum_offset 256
  .amdhsa_group_segment_fixed_size 0
  .amdhsa_kernarg_size 104
  .amdhsa_user_sgpr_count 2
  .amdhsa_user_sgpr_kernarg_segment_ptr 1
  .amdhsa_system_sgpr_workgroup_id_x 1
.end_amdhsa_kernel
.p2align 6
'''
    txt += d2
    open(out, 'w').write(txt)
    print('wrote', out, len(txt), 'bytes')

main(sys.argv[1])
```

```python
from asmlib import *
import math, struct

WF_OFF = 0x2400000
CSCALE = math.log2(math.e) / math.sqrt(128.0)
def f32bits(x): return struct.unpack('<I', struct.pack('<f', x))[0]

S_X, S_WQ, S_K, S_V, S_WS, S_WO = 8, 12, 16, 20, 24, 28
sW, sPAR, sP, sB, sHP = 32, 33, 34, 35, 36
sT0, sT1, sT2, sT3 = 37, 38, 39, 40
sXO, sWO_, sM4, sCNT, sM5, sWFO = 41, 42, 43, 44, 45, 46
sKO, sHEAD, sGIVEN, sOFB, sC, sBIG = 47, 48, 49, 50, 51, 52
sVO = 54
sOT = 56
def srd(b): return 's[%d:%d]' % (b, b + 3)
def vr(b, n=4): return 'v[%d:%d]' % (b, b + n - 1)
def ar(b, n=4): return 'a[%d:%d]' % (b, b + n - 1)

XB = 65536; XSLOT = 36864; WSLOT = 16384
vKD = 34
vVD = 38

def kdma(pslot, tag, soff=None):
    G = []
    for i in range(4):
        g = []
        if i == 0: g.append('s_add_u32 m0, s%d, %d' % (sM4, pslot * 16384))
        g.append(('buffer_load_dwordx4 v%d, %s, s%d offen offset:%d nt lds' % (vKD + i, srd(S_K), sKO, i * 1024), tag))
        G.append(g)
    G[-1].append('s_add_u32 s%d, s%d, 16384' % (sKO, sKO))
    return G
def vdma(pslot, tag):
    G = []
    for i in range(4):
        g = []
        if i == 0: g.append('s_add_u32 m0, s%d, %d' % (sM4, 65536 + pslot * 16384))
        g.append(('buffer_load_dwordx4 v%d, %s, s%d offen offset:%d nt lds' % (vVD + i % 2, srd(S_V), sVO, i * 1024), tag))
        G.append(g)
    G[-1].append('s_add_u32 s%d, s%d, 16384' % (sVO, sVO))
    return G

def gen_k1(P, name='attn_kernel'):
    spol = 'sc1' if P.opt.get('fused', '1') == '1' else P.opt.get('wfpol', '')
    e = P.e
    def emit_groups(G):
        for g in G:
            for x in g:
                if isinstance(x, tuple): e(x[0], tag=x[1])
                else: e(x)
    P.block('k1_pre')
    e('.p2align 8')
    e('.globl %s' % name)
    e('.type %s,@function' % name)
    e('%s:' % name)
    e('s_cmp_ge_u32 s2, 256')
    e('s_cbranch_scc1 K1_DONE')
    e('s_load_dwordx16 s[64:79], s[0:1], 0')
    e('s_load_dwordx8 s[80:87], s[0:1], 64')
    e('s_load_dwordx2 s[88:89], s[0:1], 96')
    e('v_lshrrev_b32 v1, 6, v0')
    e('v_and_b32 v2, 63, v0')
    e('v_readfirstlane_b32 s%d, v1' % sW)
    e('v_and_b32 v3, 15, v2')
    e('v_lshrrev_b32 v4, 4, v2')
    e('v_lshrrev_b32 v5, 2, v3')
    e('v_and_b32 v6, 3, v2')
    e('v_lshlrev_b32 v7, 4, v2')
    e('s_and_b32 s%d, s%d, 1' % (sPAR, sW))
    e('s_and_b32 s37, s2, 7')
    e('s_lshr_b32 s38, s2, 3')
    e('s_lshr_b32 s%d, s37, 2' % sP)
    e('s_and_b32 s39, s37, 2')
    e('s_lshl_b32 s39, s39, 1')
    e('s_and_b32 s40, s38, 3')
    e('s_add_u32 s%d, s39, s40' % sB)
    e('s_and_b32 s39, s37, 1')
    e('s_lshl_b32 s39, s39, 3')
    e('s_lshr_b32 s40, s38, 2')
    e('s_add_u32 s%d, s39, s40' % sHP)
    e('s_lshl_b32 s%d, s%d, 12' % (sM4, sW))
    vXD, vWD = 40, 45
    e('v_lshrrev_b32 v11, 3, v2')
    e('v_and_b32 v12, 7, v2')
    e('v_lshrrev_b32 v13, 1, v11')
    e('s_movk_i32 s37, 1280')
    e('v_mul_lo_u32 v11, v11, s37')
    e('s_mul_i32 s37, s%d, %d' % (sW, 72 * 1280))
    for i in range(4):
        e('s_add_u32 s38, s%d, %d' % (sPAR, i))
        e('s_and_b32 s38, s38, 1')
        e('s_lshl_b32 s38, s38, 2')
        e('v_or_b32 v14, s38, v13')
        e('v_xor_b32 v14, v14, v12')
        e('v_lshlrev_b32 v14, 4, v14')
        e('v_add_u32 v14, v14, v11')
        e('s_add_u32 s38, s37, %d' % (i * (8 * 1280 - 1024)))
        e('v_add_u32 v%d, s38, v14' % (vXD + i))
    e('s_mul_i32 s%d, s%d, 9216' % (sM5, sW))
    e('s_add_u32 s%d, s%d, %d' % (sM5, sM5, XB))
    e('v_lshrrev_b32 v12, 5, v2')
    e('v_and_b32 v13, 31, v2')
    e('s_lshl_b32 s37, s%d, 2' % sPAR)
    e('v_or_b32 v14, s37, v12')
    e('v_lshlrev_b32 v12, 13, v12')
    e('s_lshl_b32 s37, s%d, 16' % sW)
    e('v_add_u32 v12, s37, v12')
    for i in range(4):
        e('v_or_b32 v15, %d, v14' % (2 * (i & 1)))
        e('v_lshlrev_b32 v15, 1, v15')
        e('v_xor_b32 v15, v15, v13')
        e('v_lshlrev_b32 v15, 4, v15')
        e('v_add_u32 v15, v15, v12')
        e('v_add_u32 v%d, %d, v15' % (vWD + i, i * (16384 - 1024)))
    e('s_waitcnt lgkmcnt(0)')
    e('s_cmp_eq_u32 s%d, 0' % sP)
    e('s_cselect_b64 s[90:91], s[64:65], s[74:75]')
    e('s_cselect_b64 s[96:97], s[70:71], s[80:81]')
    e('s_cselect_b64 s[92:93], s[66:67], s[76:77]')
    e('s_cselect_b64 s[94:95], s[68:69], s[78:79]')
    e('s_mul_i32 s37, s%d, 368640' % sB)
    e('s_add_u32 s%d, s90, s37' % S_X)
    e('s_addc_u32 s%d, s91, 0' % (S_X + 1))
    e('s_mov_b32 s%d, 368640' % (S_X + 2))
    e('s_mov_b32 s%d, 0x00020000' % (S_X + 3))
    e('s_mov_b32 s%d, s96' % S_WQ)
    e('s_mov_b32 s%d, s97' % (S_WQ + 1))
    e('s_mov_b32 s%d, 5242880' % (S_WQ + 2))
    e('s_mov_b32 s%d, 0x00020000' % (S_WQ + 3))
    e('s_mov_b32 s%d, 0' % sXO)
    e('s_lshl_b32 s%d, s%d, 9' % (sWO_, sHP))
    xpol = P.opt.get('xpol', 'nt'); wpol = P.opt.get('wpol', 'nt')
    def wdma(slot, tag):
        G = []
        for i in range(4):
            g = []
            if i == 0: g.append('s_add_u32 m0, s%d, %d' % (sM4, slot * WSLOT))
            g.append(('buffer_load_dwordx4 v%d, %s, s%d offen offset:%d %s lds' % (vWD + i, srd(S_WQ), sWO_, i * 1024, wpol), tag))
            G.append(g)
        G[-1].append('s_add_u32 s%d, s%d, %d' % (sWO_, sWO_, 32 * 8192))
        return G
    def xdma(slot, tag):
        G = []
        for i in range(9):
            g = []
            if i % 4 == 0:
                g.append('s_add_u32 m0, s%d, %d' % (sM5, slot * XSLOT + i * 1024))
                if i: g.append('s_add_u32 s%d, s%d, %d' % (sT0, sXO, i * 8 * 1280))
            g.append(('buffer_load_dwordx4 v%d, %s, s%d offen offset:%d %s lds' % (vXD + i % 4, srd(S_X), sT0 if i >= 4 else sXO, (i % 4) * 1024, xpol), tag))
            G.append(g)
        G[-1].append('s_add_u32 s%d, s%d, 128' % (sXO, sXO))
        return G
    emit_groups(wdma(0, 'q0'))
    emit_groups(xdma(0, 'q0'))
    e('s_lshr_b32 s37, s2, 7')
    e('s_cmp_eq_u32 s37, 0')
    e('s_cselect_b64 s[98:99], s[72:73], s[82:83]')
    e('s_and_b32 s38, s2, 127')
    e('s_mul_i32 s39, s38, 40960')
    e('s_add_u32 s%d, s98, s39' % S_WO)
    e('s_addc_u32 s%d, s99, 0' % (S_WO + 1))
    e('s_mov_b32 s%d, 40960' % (S_WO + 2))
    e('s_mov_b32 s%d, 0x00020000' % (S_WO + 3))
    e('s_lshl_b32 s39, s37, 3')
    e('s_lshl_b32 s40, s%d, 1' % sW)
    e('s_add_u32 s39, s39, s40')
    e('s_lshl_b32 s39, s39, 7')
    e('s_add_u32 s39, s39, s38')
    e('s_mul_i32 s%d, s39, 5120' % sWFO)
    e('s_add_u32 s%d, s%d, %d' % (sWFO, sWFO, WF_OFF))
    WOS = 139264
    def wodma(half, tag):
        G = [['s_mul_i32 s%d, s%d, 5120' % (sT2, sW), 's_add_u32 m0, s%d, %d' % (sT2, WOS), 's_add_u32 s%d, s%d, %d' % (sT3, sT2, half * 20480)]]
        for i in range(4):
            G.append([('buffer_load_dwordx4 v7, %s, s%d offen offset:%d nt lds' % (srd(S_WO), sT3, i * 1024), tag)])
        G.append(['s_add_u32 m0, s%d, %d' % (sT2, WOS + 4096), 's_add_u32 s%d, s%d, 4096' % (sT3, sT3),
                  ('buffer_load_dwordx4 v7, %s, s%d offen nt lds' % (srd(S_WO), sT3), tag)])
        return G
    emit_groups(wodma(0, 'q1'))
    emit_groups(wdma(1, 'q1'))
    emit_groups(xdma(1, 'q2'))
    emit_groups(wdma(2, 'q2'))
    emit_groups(wdma(3, 'q3'))
    e('s_lshl_b32 s37, s%d, 5' % sB)
    e('s_lshl_b32 s38, s%d, 1' % sHP)
    e('s_add_u32 s37, s37, s38')
    e('s_lshl_b32 s37, s37, 18')
    for (S, src) in ((S_K, 92), (S_V, 94)):
        e('s_add_u32 s%d, s%d, s37' % (S, src))
        e('s_addc_u32 s%d, s%d, 0' % (S + 1, src + 1))
        e('s_mov_b32 s%d, 524288' % (S + 2))
        e('s_mov_b32 s%d, 0x00020000' % (S + 3))
    e('s_mov_b32 s%d, s88' % S_WS)
    e('s_mov_b32 s%d, s89' % (S_WS + 1))
    e('s_mov_b32 s%d, %d' % (S_WS + 2, WF_OFF + 10485760))
    e('s_mov_b32 s%d, 0x00020000' % (S_WS + 3))
    e('s_mov_b32 s%d, 0x%08x' % (sC, f32bits(CSCALE)))
    e('s_mov_b32 s%d, 0x%08x' % (sBIG, f32bits(2.0 ** 40)))
    e('v_lshlrev_b32 v12, 2, v4')
    e('v_add_u32 v12, v12, v5')
    e('s_movk_i32 s37, 1280')
    e('v_mul_lo_u32 v12, v12, s37')
    e('s_mul_i32 s37, s%d, 320' % sW)
    e('s_add_u32 s37, s37, %d' % WOS)
    e('v_add_u32 v12, s37, v12')
    e('v_lshlrev_b32 v13, 4, v6')
    e('v_add_u32 v8, v12, v13')
    e('v_lshlrev_b32 v14, 3, v6')
    e('v_add_u32 v9, v12, v14')
    WFR = 152
    def wo_reads(half):
        L = []
        for g2 in range(2):
            for t in range(5):
                r = WFR + 4 * (g2 * 5 + t) + 2 * half
                if t < 4: a = 'v8'; off = g2 * 160 + (t // 2) * 64 + (t % 2) * 8
                else: a = 'v9'; off = g2 * 160 + 128
                L.append('ds_read_b64_tr_b16 %s, %s offset:%d' % (ar(r, 2), a, off))
        return L
    def wo_stores():
        L = []
        for g2 in range(2):
            L.append('s_add_u32 s%d, s%d, %d' % (sT2, sWFO, g2 * 128 * 5120))
            L.append('s_add_u32 s%d, s%d, 4096' % (sT3, sT2))
            for t in range(5):
                r = WFR + 4 * (g2 * 5 + t)
                if t < 4: L.append(('buffer_store_dwordx4 %s, v7, %s, s%d offen offset:%d' % (ar(r), srd(S_WS), sT2, t * 1024) + ' ' + spol, 'wfst'))
                else: L.append(('buffer_store_dwordx4 %s, v7, %s, s%d offen' % (ar(r), srd(S_WS), sT3) + ' ' + spol, 'wfst'))
        return L
    if getattr(P, 'prof', False):
        e('s_mov_b32 s61, s88'); e('s_mov_b32 s55, s89')
        e('s_memrealtime s[96:97]'); e('s_waitcnt lgkmcnt(0)')
        e('s_mov_b32 s100, 0'); e('s_mov_b32 s101, 0')
    P.stamp(0)
    vXA, vXS = 16, 10
    vWX, vWY = 18, 26
    e('v_lshrrev_b32 v12, 1, v3')
    e('v_lshlrev_b32 v13, 7, v3')
    e('s_lshl_b32 s37, s%d, 13' % sW)
    e('s_add_u32 s37, s37, %d' % XB)
    e('s_lshr_b32 s38, s%d, 1' % sW)
    e('s_lshl_b32 s38, s38, 11')
    e('s_add_u32 s38, s38, %d' % (XB + 256 * 128))
    for ks in range(2):
        e('v_add_u32 v14, %d, v4' % (4 * ks))
        e('v_xor_b32 v14, v14, v12')
        e('v_lshlrev_b32 v14, 4, v14')
        e('v_add_u32 v14, v14, v13')
        e('v_add_u32 v%d, s37, v14' % (vXA + ks))
        e('v_add_u32 v%d, s38, v14' % (vXS + ks))
    e('v_and_b32 v12, 1, v4')
    e('v_lshlrev_b32 v12, 2, v12')
    e('v_or_b32 v12, v12, v5')
    e('v_lshlrev_b32 v13, 3, v4')
    e('v_add_u32 v13, v13, v5')
    e('v_lshlrev_b32 v13, 9, v13')
    e('s_lshl_b32 s38, s%d, 8' % sPAR)
    e('s_xor_b32 s39, s38, 256')
    e('v_lshlrev_b32 v12, 1, v12')
    for ds in range(4):
        e('v_add_u32 v14, %d, v6' % (4 * ds))
        e('v_xor_b32 v14, v14, v12')
        e('v_lshlrev_b32 v14, 4, v14')
        e('v_add_u32 v14, v14, v13')
        e('v_add_u32 v%d, s38, v14' % (vWX + ds))
        e('v_add_u32 v%d, s39, v14' % (vWY + ds))
    e('v_lshlrev_b32 v12, 8, v4')
    e('v_add_u32 v12, s%d, v12' % sM4)
    for i in range(4):
        e('v_add_u32 v13, %d, v4' % (4 * i))
        e('v_xor_b32 v13, v13, v3')
        e('v_lshlrev_b32 v13, 4, v13')
        e('v_add_u32 v%d, v13, v12' % (vKD + i))
    for i in range(2):
        e('v_add_u32 v13, %d, v4' % (4 * i))
        e('v_lshlrev_b32 v13, 1, v13')
        e('v_xor_b32 v13, v13, v3')
        e('v_lshlrev_b32 v13, 4, v13')
        e('v_add_u32 v%d, v13, v12' % (vVD + i))
    e('s_mov_b32 s%d, 0' % sKO)
    e('s_mov_b32 s%d, 0' % sVO)
    e('v_lshlrev_b32 v49, 7, v2')
    e('s_lshl_b32 s37, s%d, 13' % sW)
    e('v_add_u32 v49, s37, v49')
    e('s_mov_b32 s53, %d' % (int(P.opt.get('pf0', 2)) * 16384))

    tiles = [('X', t0, q) for t0 in range(8) for q in range(5)] + [('Y', t0, q) for t0 in range(8) for q in range(4)]
    accmap = {}
    nv = 0; na = 0
    for tl in [t for t in tiles if t[0] == 'Y'] + [t for t in tiles if t[0] == 'X']:
        if nv < 48:
            accmap[tl] = ('v', 64 + 4 * nv); nv += 1
        else:
            accmap[tl] = ('a', 4 * na); na += 1
    def acc(g, t0, q):
        k, b = accmap[(g, t0, q)]; return '%s[%d:%d]' % (k, b, b + 3)
    ARING = 96
    BF = 112
    def bfrag(par, q): return ar(BF + 20 * par + 4 * q)
    def aslot(i): return ar(ARING + 4 * (i % 4))
    def a_loads(c, i):
        va = (vWX + i // 2) if i < 8 else (vWY + (i - 8) // 2)
        r = ARING + 4 * (i % 4); o = (c % 4) * WSLOT + 8 * (i % 2)
        return ['ds_read_b64_tr_b16 %s, v%d offset:%d' % (ar(r, 2), va, o), 'ds_read_b64_tr_b16 %s, v%d offset:%d' % (ar(r + 2, 2), va, o + 2048)]
    def b_loads(c):
        par = c % 2; o = ((c // 2) % 2) * XSLOT
        L = ['ds_read_b128 %s, v%d offset:%d' % (bfrag(par, q), vXA + par, o + q * 2048) for q in range(4)]
        L.append('ds_read_b128 %s, v%d offset:%d' % (bfrag(par, 4), vXS + par, o))
        return L
    import k1b
    k1b.early_setup(P)
    P.waitvm(['q0'])
    e('s_barrier')
    for x in b_loads(0): e(x)
    for i in range(4):
        for x in a_loads(0, i): e(x)
    P.stamp(1)

    seq = [(i, q) for i in range(16) for q in range(5 if i < 8 else 4)]
    NQ = len(seq)
    first = {}; lastuse = {}
    for g, (i, q) in enumerate(seq):
        first.setdefault(i, g); lastuse[i] = g
    GBQ = 58
    def emit_qchunk(c, dma_groups, need_tag, last=False, post=None):
        par = c % 2
        cap = [2] * NQ
        fill = [[] for _ in range(NQ)]
        for i in range(0, 16, 2):
            if first[i] > 0: cap[first[i] - 1] -= 1
        def place(g, items):
            for x in items:
                while cap[g] <= 0: g += 1
                fill[g].append(x); cap[g] -= 1
            return g
        for i in range(4, 16):
            place(lastuse[i - 4], a_loads(c, i))
        assert lastuse[11] < GBQ
        cap[GBQ] -= 2; fill[GBQ].append(('BAR',))
        if not last:
            g = place(GBQ + 1, b_loads(c + 1))
            for i in range(4):
                place(max(lastuse[12 + i], GBQ + 1), a_loads(c + 1, i))
        if post: place(GBQ + 1, post)
        g = 1
        for grp in dma_groups:
            for x in grp:
                while cap[min(g, NQ - 1)] <= 0 and g < NQ - 1: g += 1
                g = min(g, NQ - 1)
                fill[g].append(x); cap[g] -= 1
            g += int(P.opt.get('qsp', 3))
        for g, (i, q) in enumerate(seq):
            grp = 'X' if i < 8 else 'Y'
            a = acc(grp, i % 8, q)
            x = aslot(i + 1) if (i % 2 == 0 and g == first[i]) else None
            e('v_mfma_f32_16x16x32_bf16 %s, %s, %s, %s' % (a, aslot(i), bfrag(par, q), a if c != 0 else '0'), xrd=x)
            for x in fill[g]:
                if isinstance(x, tuple) and x[0] == 'BAR':
                    P.acc_begin()
                    P.waitvm([need_tag] if isinstance(need_tag, str) else need_tag)
                    e('s_waitcnt lgkmcnt(0)')
                    e('s_barrier')
                    P.acc_end(0)
                elif isinstance(x, tuple): e(x[0], tag=x[1])
                else: e(x)
    P.abl = P.opt.get('qabl', '').split(',')
    P.block('k1_q0')
    emit_qchunk(0, [], 'q1', post=wo_reads(0))
    e('s_mov_b32 s%d, 4' % sCNT)
    if P.opt.get('qst'): P.stamp(8)
    P.block('k1_qloop')
    e('K1_QLOOP:')
    for cc in range(1, 5):
        G = wdma((cc + 3) % 4, 'q%d' % ((cc + 3) % 4))
        if cc % 2 == 0:
            GX = xdma((cc // 2 + 1) % 2, 'q%d' % ((cc + 2) % 4))
            G = GX + G
        pf = int(P.opt.get('pf', 0))
        if pf:
            for k in range(2 * pf):
                if k % 4 == cc - 1 or (pf > 2 and False):
                    S = S_K if k % 2 == 0 else S_V
                    g = [('buffer_load_dword v50, v49, %s, s53 offen %s' % (srd(S), P.opt.get('pfpol', '')), 'pf')]
                    if k % 2 == 1: g.append('s_add_u32 s53, s53, 32768')
                    G = G + [g]
        emit_qchunk(cc, G, 'q%d' % ((cc + 1) % 4))
    e('s_sub_u32 s%d, s%d, 1' % (sCNT, sCNT))
    e('s_cmp_lg_u32 s%d, 0' % sCNT)
    e('s_cbranch_scc1 K1_QLOOP')
    P.abl = ()
    P.block('k1_qtail')
    if P.opt.get('qst'): P.stamp(9)
    emit_qchunk(17, wodma(1, 'q3') + kdma(0, 'p0'), 'q2')
    emit_qchunk(18, vdma(0, 'p0') + kdma(1, 'p1') + vdma(1, 'p1'), 'q3')
    emit_qchunk(19, kdma(2, 'p2') if int(P.opt.get('kahead', 3)) == 3 else [], 'none', last=True, post=None)
    if P.opt.get('qst'): P.stamp(10)
    W1 = wo_reads(1)
    for x in W1: e(x)
    for x in wo_stores():
        if isinstance(x, tuple): e(x[0], tag=x[1])
        else: e(x)
    e('s_mov_b32 s%d, s86' % S_WO)
    e('s_mov_b32 s%d, s87' % (S_WO + 1))
    e('s_mov_b32 s%d, 256' % (S_WO + 2))
    P.stamp(2)
    return dict(accmap=accmap)
```

```python
from asmlib import *
from k1 import *

vQ = 64
vSF = 144
vSS = 184
vNM = 216
vL = 236
vVR = 40
vONE = 56
vKF, vKS = 8, 12
vVF, vVS = 16, 24
aO = 0
aQN = 160
aKR = 240

def Qf(qt, ds): return vr(vQ + 20 * ds + 4 * qt)
def QN(qt, ds): return aQN + 20 * ds + 4 * qt
def O(qt, dt): return ar(aO + 32 * qt + 4 * dt)
def NM(qt): return vr(vNM + 4 * qt)
def Lr(qt): return vr(vL + 4 * qt)
def Sreg(kind, qt): return (vSF if kind == 'F' else vSS) + 8 * qt

NG = 153
XA = 131072
XF = 49152

def early_setup(P):
    e = P.e
    e('s_lshl_b32 s%d, s%d, 13' % (sT0, sPAR))
    e('s_xor_b32 s%d, s%d, 8192' % (sT1, sT0))
    e('v_lshlrev_b32 v60, 8, v3')
    for ds in range(4):
        e('v_add_u32 v61, %d, v4' % (4 * ds))
        e('v_xor_b32 v61, v61, v3')
        e('v_lshlrev_b32 v61, 4, v61')
        e('v_add_u32 v61, v61, v60')
        e('v_add_u32 v62, s%d, v61' % sT0); e('v_accvgpr_write_b32 a%d, v62' % (192 + vKF - 8 + ds))
        e('v_add_u32 v62, s%d, v61' % sT1); e('v_accvgpr_write_b32 a%d, v62' % (192 + vKS - 8 + ds))
    e('v_lshlrev_b32 v60, 2, v4')
    e('v_add_u32 v60, v60, v5')
    e('v_and_b32 v63, 7, v60')
    e('v_lshlrev_b32 v60, 8, v60')
    e('v_lshlrev_b32 v61, 3, v6')
    e('v_add_u32 v60, v60, v61')
    e('s_add_u32 s%d, s%d, 65536' % (sT0, sT0))
    e('s_add_u32 s%d, s%d, 65536' % (sT1, sT1))
    for dt in range(8):
        e('v_xor_b32 v61, %d, v63' % dt)
        e('v_lshlrev_b32 v61, 5, v61')
        e('v_add_u32 v61, v61, v60')
        e('v_add_u32 v62, s%d, v61' % sT0); e('v_accvgpr_write_b32 a%d, v62' % (192 + vVF - 8 + dt))
        e('v_add_u32 v62, s%d, v61' % sT1); e('v_accvgpr_write_b32 a%d, v62' % (192 + vVS - 8 + dt))
    for qt in range(5):
        if qt < 4:
            e('s_lshl_b32 s%d, s%d, 2' % (sT0, sW)); e('s_add_u32 s%d, s%d, %d' % (sT0, sT0, qt))
        else:
            e('s_lshr_b32 s%d, s%d, 1' % (sT0, sW)); e('s_add_u32 s%d, s%d, 16' % (sT0, sT0))
        e('s_cmp_ge_u32 s%d, 9' % sT0)
        e('s_cselect_b32 s%d, 1, 0' % sT1)
        e('s_mul_i32 s%d, s%d, 9' % (sT2, sT1))
        e('s_sub_u32 s%d, s%d, s%d' % (sT0, sT0, sT2))
        e('s_lshl_b32 s%d, s%d, 4' % (sT2, sP))
        e('s_lshl_b32 s%d, s%d, 1' % (sT3, sB))
        e('s_add_u32 s%d, s%d, s%d' % (sT2, sT2, sT3))
        e('s_add_u32 s%d, s%d, s%d' % (sT2, sT2, sT1))
        e('s_mul_i32 s%d, s%d, %d' % (sT2, sT2, 128 * 9216))
        e('s_lshl_b32 s%d, s%d, 10' % (sT0, sT0))
        e('s_add_u32 s%d, s%d, s%d' % (sOT + qt, sT2, sT0))
    e('s_lshl_b32 s%d, s%d, 3' % (sT0, sHP))
    e('s_mul_i32 s%d, s%d, 9216' % (sOFB, sT0))

def gen_fixup(P, info, paths_prefix):
    e = P.e
    accmap = info['accmap']
    P.block('k1_fx')
    for i in range(24): e('v_accvgpr_read_b32 v%d, a%d' % (8 + i, 192 + i))
    e('s_mov_b32 s98, s%d' % sC)
    e('s_mov_b32 s99, s%d' % sC)
    e('s_lshl_b32 s%d, s%d, 12' % (sT0, sW))
    e('s_add_u32 s%d, s%d, %d' % (sT0, sT0, XF))
    e('v_add_u32 v32, s%d, v7' % sT0)
    e('s_and_b32 s%d, s%d, 2' % (sT0, sW))
    e('s_lshl_b32 s%d, s%d, 12' % (sT0, sT0))
    e('s_add_u32 s%d, s%d, %d' % (sT0, sT0, XF))
    e('v_add_u32 v33, s%d, v7' % sT0)
    e('s_cmp_eq_u32 s%d, 1' % sPAR)
    e('s_cbranch_scc1 K1_FX1')
    for par in range(2):
        P.block('k1_fx%d' % par)
        if par == 1: e('K1_FX1:')
        def src(hd, ds, q, which):
            grp = 'X' if hd == par else 'Y'
            return accmap[(grp, 2 * ds + which, q)]
        tmp = [40, 44, 48, 52, 56, 60]
        tc = [0]
        def newtmp():
            t = tmp[tc[0] % 6]; tc[0] += 1; return t
        def stages(hd, ds, q, dest):
            A = src(hd, ds, q, 0); B = src(hd, ds, q, 1)
            st = [[], [], [], [], [], []]
            regs = []
            for (k, b) in (A, B):
                if k == 'a':
                    t = newtmp()
                    for i in range(4): st[0].append('v_accvgpr_read_b32 v%d, a%d' % (t + i, b + i))
                    regs.append(t)
                else: regs.append(b)
            for rb in regs:
                for i in (0, 2): st[1].append('v_pk_mul_f32 v[%d:%d], v[%d:%d], s[98:99]' % (rb + i, rb + i + 1, rb + i, rb + i + 1))
            d = dest[1] if dest[0] == 'v' else newtmp()
            st[2] = ['v_cvt_pk_bf16_f32 v%d, v%d, v%d' % (d + 0, regs[0], regs[0] + 1),
                     'v_cvt_pk_bf16_f32 v%d, v%d, v%d' % (d + 1, regs[0] + 2, regs[0] + 3),
                     'v_cvt_pk_bf16_f32 v%d, v%d, v%d' % (d + 2, regs[1], regs[1] + 1),
                     'v_cvt_pk_bf16_f32 v%d, v%d, v%d' % (d + 3, regs[1] + 2, regs[1] + 3)]
            if dest[0] == 'a': st[5] = ['v_accvgpr_write_b32 a%d, v%d' % (dest[1] + i, d + i) for i in range(4)]
            if dest[0] == 'lds': st[5] = ['ds_write_b128 v32, %s offset:%d' % (vr(d), dest[1])]
            return st
        work = [(par, ds, 4, ('lds', ds * 1024)) for ds in range(4)]
        work += [(1, ds, q, ('a', QN(q, ds))) for ds in range(4) for q in range(4)]
        work += [(0, ds, q, ('v', vQ + 20 * ds + 4 * q)) for ds in range(4) for q in range(4)]
        if par == 1:
            pass
        for i in range(0, len(work), 2):
            s1 = stages(*work[i]); s2 = stages(*work[i + 1])
            for k in range(6):
                for x in s1[k]: e(x)
                for x in s2[k]: e(x)
        e('s_waitcnt lgkmcnt(0)')
        e('s_barrier')
        for ds in range(4):
            e('ds_read_b128 %s, v33 offset:%d' % (Qf(4, ds), ds * 1024))
            e('ds_read_b128 %s, v33 offset:%d' % (ar(QN(4, ds)), 4096 + ds * 1024))
        if par == 0: e('s_branch K1_ATT')

def gen_attn(P, info, dump=None):
    e = P.e
    P.block('k1_asetup')
    e('K1_ATT:')
    for i in range(4): e('v_mov_b32 v%d, 0x3f803f80' % (vONE + i))
    e('s_mov_b32 s%d, 0' % sHEAD)
    e('s_mov_b32 s%d, 0' % sGIVEN)
    P.waitvm(['p0'])
    e('s_waitcnt lgkmcnt(0)')
    e('s_barrier')

    GB = 128
    def mfmas(p):
        M = []
        ps = p % 4
        for f in range(8):
            kt, ds = f // 4, f % 4
            for qt in range(5):
                D = vr(Sreg('F', qt) + 4 * kt)
                C = D if ds else NM(qt)
                M.append(dict(ph=1, blk=('F', p), D=D, A=ar(aKR + 4 * (f % 4)), B=Qf(qt, ds), C=C, kf=f, qt=qt, ds=ds))
        for qt in range(4):
            M.append(dict(ph=2, blk=('S', p - 1), D=Lr(qt), A=vr(vONE), B=vr(Sreg('S', qt)), C=Lr(qt), qt=qt, l=True))
        for dt in range(8):
            for qt in range(4):
                M.append(dict(ph=2, blk=('S', p - 1), D=O(qt, dt), A=vr(vVR + 4 * (dt % 4)), B=vr(Sreg('S', qt)), C=O(qt, dt), vf=dt, qt=qt))
        for f in range(8):
            kt, ds = f // 4, f % 4
            for qt in range(4):
                D = vr(Sreg('S', qt) + 4 * kt)
                C = D if ds else NM(qt)
                M.append(dict(ph=3, blk=('S', p), D=D, A=ar(aKR + 4 * (f % 4)), B=Qf(qt, ds), C=C, kf=f, qt=qt, ds=ds))
        for qt in range(5):
            M.append(dict(ph=4, blk=('F', p), D=Lr(qt), A=vr(vONE), B=vr(Sreg('F', qt)), C=Lr(qt), qt=qt, l=True))
        for dt in range(8):
            for qt in range(5):
                M.append(dict(ph=4, blk=('F', p), D=O(qt, dt), A=vr(vVR + 4 * (dt % 4)), B=vr(Sreg('F', qt)), C=O(qt, dt), vf=dt, qt=qt))
        assert len(M) == NG
        return M
    PH0 = {1: 0, 2: 40, 3: 76, 4: 108}
    def fillers(p):
        F = []
        ps = p % 4
        def sm(kind, nq, g0):
            k = 0
            for kt in range(2):
                for qt in range(nq):
                    b = Sreg(kind, qt)
                    for i in range(4):
                        g = g0 + 2 * k
                        r = b + 4 * kt + i
                        F.append((g, 1, 'v_exp_f32 v%d, v%d' % (r, r), (kind, p)))
                        if i % 2 == 1:
                            F.append((g + 1, 2, 'v_cvt_pk_bf16_f32 v%d, v%d, v%d' % (b + 2 * kt + i // 2, r - 1, r), (kind, p)))
                        k += 1
        sm('F', 5, 24)
        sm('S', 4, 104)
        return F
    def kload(kind, p, f):
        kt, ds = f // 4, f % 4
        va = (vKF if kind == 'F' else vKS) + ds
        return ['ds_read_b128 %s, v%d offset:%d' % (ar(aKR + 4 * (f % 4)), va, (p % 4) * 16384 + kt * 4096)]
    def vload(kind, p, dt):
        va = (vVF if kind == 'F' else vVS) + dt
        r = vVR + 4 * (dt % 4)
        return ['ds_read_b64_tr_b16 %s, v%d offset:%d' % (vr(r, 2), va, (p % 4) * 16384),
                'ds_read_b64_tr_b16 %s, v%d offset:%d' % (vr(r + 2, 2), va, (p % 4) * 16384 + 4096)]

    PMIN, PMAX = -1, 17
    slots = {}
    for p in range(PMIN, PMAX):
        for g, m in enumerate(mfmas(p)):
            slots[p * NG + g] = dict(m=m, v=[], l=[], s=[], p=p, g=g)
    for p in range(PMIN, PMAX):
        for (g, prio, text, blk) in fillers(p):
            GG = p * NG + g
            if GG in slots: slots[GG]['v'].append((text, blk))
    def cap(GG):
        s = slots[GG]
        used = sum(2 if t.startswith('v_exp') else 1 for t, _ in s['v']) + len(s['l']) + sum(len(x[1]) if x[0] == 'DMA' else 2 for x in s['s'])
        return 2 - used
    loads = []
    for p in range(PMIN, PMAX):
        base = p * NG
        for f in range(8): loads.append(dict(t='K', blk=('F', p), f=f, use=base + 5 * f, last=base + 5 * f + 4, per=p))
        for f in range(8): loads.append(dict(t='V', blk=('S', p - 1), f=f, use=base + 44 + 4 * f, last=base + 44 + 4 * f + 3, per=p - 1))
        for f in range(8): loads.append(dict(t='K', blk=('S', p), f=f, use=base + 76 + 4 * f, last=base + 76 + 4 * f + 3, per=p))
        for f in range(8): loads.append(dict(t='V', blk=('F', p), f=f, use=base + 113 + 5 * f, last=base + 113 + 5 * f + 4, per=p))
    byring = {'K': [x for x in loads if x['t'] == 'K'], 'V': [x for x in loads if x['t'] == 'V']}
    for ring in byring.values():
        for i, x in enumerate(ring):
            free = ring[i - 4]['last'] if i >= 4 else PMIN * NG
            bar = (x['per'] - 1) * NG + GB + 1
            x['early'] = max(free, bar)
    loads.sort(key=lambda x: x['use'])
    LA_MAX = 40
    for x in loads:
        ops = kload(x['blk'][0], x['blk'][1], x['f']) if x['t'] == 'K' else vload(x['blk'][0], x['blk'][1], x['f'])
        GG = max(x['early'], x['use'] - LA_MAX)
        for op in ops:
            while GG in slots and cap(GG) <= 0: GG += 1
            if GG not in slots: break
            slots[GG]['l'].append((op, x['blk']))
            x.setdefault('at', []).append(GG)
        if 'at' in x and x['use'] - x['at'][-1] < 6 and 2 <= x['blk'][1] <= 8:
            print('WARN short lookahead', x)
    for p in range(PMIN, PMAX - 1):
        GG = p * NG + GB
        slots[GG]['s'].append(('BAR', p + 1))
        ka = int(P.opt.get('kahead', 3)); sp = int(P.opt.get('dsp', 1))
        GV = vdma((p + 3) % 4, 'p%d' % ((p + 3) % 4)); GK = kdma((p + 1 + ka) % 4, 'p%d' % ((p + 1 + ka) % 4))
        G = GV + GK
        pos = GG + 2
        for g in G:
            p2 = pos
            while p2 in slots and cap(p2) < len(g) and p2 < pos + 6: p2 += 1
            if p2 in slots and cap(p2) < len(g):
                p2 = pos
                while p2 in slots and cap(p2) < 1: p2 += 1
            pos = p2
            if pos not in slots: break
            slots[pos]['s'].append(('DMA', g, p + 1))
            pos += sp
    return dict(slots=slots, NG=NG, GB=GB)
```

```python
from asmlib import *
from k1 import *
from k1b import *

def gen_emit(P, info, T):
    e = P.e
    fused = P.opt.get('fused', '1') == '1'
    spol = ' sc1' if fused else (' ' + P.opt.get('ostp', ''))
    slots, GB = T['slots'], T['GB']
    def valid(blk): return 0 <= blk[1] <= 15
    def emit_item_groups(g):
        for x in g:
            if isinstance(x, tuple): e(x[0], tag=x[1])
            else: e(x)
    def emit_range(G0, G1, zero_first=False, rawS0=False, skipv=None, skip_dma=False, skip_bar=False):
        for GG in range(G0, G1):
            s = slots[GG]; m = s['m']
            if valid(m['blk']):
                C = m['C']
                if zero_first and m['blk'] == ('F', 0) and m['ph'] == 4: C = '0'
                if rawS0 and m['ph'] == 1 and m['blk'] == ('F', 0) and m.get('ds') == 0: C = '0'
                e('v_mfma_f32_16x16x32_bf16 %s, %s, %s, %s' % (m['D'], m['A'], m['B'], C))
            for (t, blk) in s['l']:
                if valid(blk): e(t)
            for it in s['s']:
                if it[0] == 'BAR':
                    if skip_bar: continue
                    P.acc_begin()
                    P.waitvm(['p%d' % (it[1] % 4)])
                    e('s_barrier')
                    P.acc_end(1)
                    if P.opt.get('ist'):
                        e('s_memtime s[90:91]'); e('s_waitcnt lgkmcnt(0)')
                        e('s_mov_b32 s91, m0'); e('s_mov_b32 m0, s101'); e('v_writelane_b32 v1, s90, m0'); e('s_mov_b32 m0, s91'); e('s_add_u32 s101, s101, 1')
                elif it[0] == 'DMA':
                    if not skip_dma: emit_item_groups(it[1])
            for (t, blk) in s['v']:
                if valid(blk) and not (skipv and skipv(GG, t, blk)): e(t)
    P.cur = P.blocks['k1_asetup']
    c0 = []
    for GG in range(-NG + GB, GB):
        for it in slots[GG]['s']:
            if it[0] == 'DMA' and it[2] == 0: c0.append((GG, it[1]))
    assert len(c0) == 8, c0
    def emit_c0_early():
        for GG, g in c0:
            if GG < 0: emit_item_groups(g)
    emit_c0_early()

    P.stamp(3)
    P.block('k1_A')
    e('K1_A:')
    for GG in range(-NG + GB, 0):
        for (t, blk) in slots[GG]['l']:
            if blk == ('F', 0): e(t)
    deferred = []
    def skipv(GG, t, blk):
        if blk == ('F', 0) and GG < 40:
            deferred.append(t); return True
        return False
    emit_range(0, 40, rawS0=True, skipv=skipv)
    e('s_cmp_eq_u32 s%d, 1' % sGIVEN)
    e('s_cbranch_scc1 K1_AGIVEN')
    P.block('k1_Amax')
    R = range(5)
    def S(qt, i): return vSF + 8 * qt + i
    def N(qt, i): return vNM + 4 * qt + i
    for qt in R: e('v_max3_f32 v%d, v%d, v%d, v%d' % (N(qt, 0), S(qt, 0), S(qt, 1), S(qt, 2)))
    for qt in R: e('v_max3_f32 v%d, v%d, v%d, v%d' % (N(qt, 1), S(qt, 3), S(qt, 4), S(qt, 5)))
    for qt in R: e('v_max3_f32 v%d, v%d, v%d, v%d' % (N(qt, 0), N(qt, 0), S(qt, 6), S(qt, 7)))
    for qt in R: e('v_max_f32 v%d, v%d, v%d' % (N(qt, 0), N(qt, 0), N(qt, 1)))
    def xreduce_max():
        for sw in ('v_permlane32_swap_b32', 'v_permlane16_swap_b32'):
            for qt in R: e('v_mov_b32 v%d, v%d' % (N(qt, 1), N(qt, 0)))
            for qt in R: e('%s v%d, v%d' % (sw, N(qt, 0), N(qt, 1)))
            for qt in R: e('v_max_f32 v%d, v%d, v%d' % (N(qt, 0), N(qt, 0), N(qt, 1)))
        for qt in R: e('v_sub_f32 v%d, 0, v%d' % (N(qt, 0), N(qt, 0)))
        for i in range(1, 4):
            for qt in R: e('v_mov_b32 v%d, v%d' % (N(qt, i), N(qt, 0)))
    xreduce_max()
    P.block('k1_A2')
    e('K1_AGIVEN:')
    for i in range(8):
        for qt in R: e('v_add_f32 v%d, v%d, v%d' % (S(qt, i), N(qt, 0), S(qt, i)))
    for t in deferred: e(t)
    emit_range(40, GB, zero_first=True)
    P.block('k1_B')
    P.stamp(4)
    emit_range(GB, NG + GB, zero_first=True)
    e('s_mov_b32 s%d, 4' % sCNT)
    def text_of(G0, G1):
        save = P.cur; tmp = []; P.cur = tmp
        emit_range(G0, G1); P.cur = save
        return [i.text for i in tmp]
    for p in range(2, 12):
        assert text_of((p - 1) * NG + GB, p * NG + GB) == text_of((p + 3) * NG + GB, (p + 4) * NG + GB), p
    P.abl = P.opt.get('aabl', '').split(',')
    P.block('k1_L1')
    e('K1_L1:')
    emit_range(1 * NG + GB, 3 * NG + GB)
    e('s_sub_u32 s%d, s%d, 1' % (sCNT, sCNT))
    e('s_cmp_eq_u32 s%d, 0' % sCNT)
    e('s_cbranch_scc1 K1_T')
    P.block('k1_L2')
    emit_range(3 * NG + GB, 5 * NG + GB)
    e('s_branch K1_L1')
    P.abl = ()
    P.block('k1_T')
    e('K1_T:')
    P.stamp(5)
    emit_range(15 * NG + GB, 16 * NG)
    emit_range(16 * NG, 16 * NG + 76, skip_dma=True)
    assert all(GG < GB for GG, _ in c0)

    PK = vSF
    P.block('k1_E')
    P.stamp(6)
    e('s_mov_b64 s[62:63], 0')
    for qt in R:
        e('v_cmp_nlt_f32 vcc, v%d, v%d' % (vL + 4 * qt, 60)) if False else None
    e('v_mov_b32 v60, s%d' % sBIG)
    for qt in R:
        e('v_cmp_nlt_f32 vcc, v%d, v60' % (vL + 4 * qt))
        e('s_or_b64 s[62:63], s[62:63], vcc')
    e('s_cmp_lg_u64 s[62:63], 0')
    e('s_cselect_b32 s%d, 1, 0' % sT0)
    e('v_mov_b32 v61, s%d' % sT0)
    e('s_lshl_b32 s%d, s%d, 2' % (sT1, sW))
    e('s_add_u32 s%d, s%d, %d' % (sT1, sT1, XA + 16384))
    e('v_mov_b32 v62, s%d' % sT1)
    e('ds_write_b32 v62, v61')
    e('v_mov_b32 v60, v%d' % (vNM + 16))
    e('v_mov_b32 v61, v%d' % (vL + 16))
    e('s_lshl_b32 s%d, s%d, 9' % (sT1, sW))
    e('s_add_u32 s%d, s%d, %d' % (sT1, sT1, XA + 16384 + 256))
    e('v_lshlrev_b32 v62, 3, v2')
    e('v_add_u32 v62, s%d, v62' % sT1)
    e('ds_write_b64 v62, v[60:61]')
    e('s_xor_b32 s%d, s%d, 512' % (sT1, sT1))
    e('v_lshlrev_b32 v63, 3, v2')
    e('v_add_u32 v63, s%d, v63' % sT1)
    e('s_lshl_b32 s%d, s%d, 12' % (sT1, sW))
    e('s_add_u32 s%d, s%d, %d' % (sT1, sT1, XA))
    e('v_add_u32 v32, s%d, v7' % sT1)
    e('s_xor_b32 s%d, s%d, 4096' % (sT1, sT1))
    e('v_add_u32 v33, s%d, v7' % sT1)
    e('s_cmp_eq_u32 s%d, 1' % sPAR)
    e('s_cbranch_scc1 K1_E1')
    names = []
    for par in range(2):
        P.block('k1_E%d' % par)
        if par: e('K1_E1:')
        keep = range(4 * par, 4 * par + 4); send = range(4 * (1 - par), 4 * (1 - par) + 4)
        for i, dt in enumerate(send):
            e('ds_write_b128 v32, %s offset:%d' % (O(4, dt), i * 1024))
        for qt in range(4):
            e('v_rcp_f32 v%d, v%d' % (vNM + 4 * qt + 2, vL + 4 * qt))
        tb = 0
        for qt in range(4):
            rr = vNM + 4 * qt + 2
            for u in range(4):
                t = vVR + 8 * (tb % 2); d = PK + 4 * (4 * qt + u); tb += 1
                for i in range(8):
                    e('v_accvgpr_read_b32 v%d, a%d' % (t + i, aO + 32 * qt + 8 * u + i))
                for i in range(0, 8, 2):
                    e('v_pk_mul_f32 v[%d:%d], v[%d:%d], v[%d:%d] op_sel_hi:[1,0]' % (t + i, t + i + 1, t + i, t + i + 1, rr, rr + 1))
                for i in range(4):
                    e('v_cvt_pk_bf16_f32 v%d, v%d, v%d' % (d + i, t + 2 * i, t + 2 * i + 1))
        if fused: P.waitvm(['wfst'])
        e('s_waitcnt lgkmcnt(0)')
        e('s_barrier')
        if fused:
            e('s_lshl_b32 s%d, s%d, 2' % (sT0, sHEAD))
            e('s_add_u32 s%d, s%d, s%d' % (sT0, sT0, sW))
            e('s_add_u32 s%d, s%d, s%d' % (sT0, sT0, sGIVEN))
            e('s_cmp_lg_u32 s%d, 0' % sT0)
            e('s_cbranch_scc1 K1_NOW%d' % par)
            e('s_lshr_b32 s%d, s2, 7' % sT0)
            e('s_lshl_b32 s%d, s%d, 2' % (sT0, sT0))
            e('s_add_u32 s%d, s%d, 64' % (sT0, sT0))
            e('v_mov_b32 v60, s%d' % sT0)
            e('v_mov_b32 v61, 1')
            e('v_cmp_eq_u32 vcc, 0, v2')
            e('s_and_saveexec_b64 s[62:63], vcc')
            e('buffer_atomic_add v61, v60, %s, 0 offen sc1' % srd(S_WO))
            e('s_mov_b64 exec, s[62:63]')
            e('K1_NOW%d:' % par)
        pb = vL
        for i in range(4):
            e('ds_read_b128 %s, v33 offset:%d' % (vr(pb + 4 * i), i * 1024))
        e('ds_read_b64 v[60:61], v63')
        e('v_mov_b32 v62, %d' % (XA + 16384))
        e('ds_read_b128 %s, v62' % vr(vVR))
        e('v_or_b32 v%d, v%d, v%d' % (vVR, vVR, vVR + 1))
        e('v_or_b32 v%d, v%d, v%d' % (vVR + 2, vVR + 2, vVR + 3))
        e('v_or_b32 v%d, v%d, v%d' % (vVR, vVR, vVR + 2))
        e('v_readfirstlane_b32 s%d, v%d' % (sT0, vVR))
        e('s_andn2_b32 s%d, s%d, s%d' % (sT0, sT0, sGIVEN))
        e('s_cmp_lg_u32 s%d, 0' % sT0)
        e('s_cbranch_scc1 K1_FB')
        P.block('k1_F%d' % par)
        nmo = vNM + 16; lo = vL + 16
        e('v_min_f32 v62, v60, v%d' % nmo)
        e('v_sub_f32 v63, v62, v%d' % nmo)
        e('v_sub_f32 v62, v62, v60')
        e('v_exp_f32 v63, v63')
        e('v_exp_f32 v62, v62')
        e('v_mul_f32 v61, v61, v62')
        e('v_fma_f32 v61, v%d, v63, v61' % lo)
        e('v_rcp_f32 v61, v61')
        e('v_mul_f32 v63, v63, v61')
        e('v_mul_f32 v62, v62, v61')
        for uu in range(2):
            t = vVR + 8 * uu; d = PK + 64 + 4 * uu
            for i in range(8):
                e('v_accvgpr_read_b32 v%d, a%d' % (t + i, aO + 128 + 4 * keep[0] + 8 * uu + i))
            for i in range(8):
                e('v_mul_f32 v%d, v63, v%d' % (t + i, t + i))
            for i in range(8):
                e('v_fma_f32 v%d, v%d, v62, v%d' % (t + i, pb + 8 * uu + i, t + i))
            for i in range(4):
                e('v_cvt_pk_bf16_f32 v%d, v%d, v%d' % (d + i, t + 2 * i, t + 2 * i + 1))
        if par == 0: e('s_branch K1_N')
    P.block('k1_N')
    e('K1_N:')
    P.stamp(7)
    e('s_cmp_eq_u32 s%d, 1' % sHEAD)
    e('s_cbranch_scc1 K1_ST')
    P.block('k1_N2')
    e('s_mov_b32 s%d, 1' % sHEAD)
    if getattr(P, 'prof', False) and not P.opt.get('qst'):
        for i in range(4):
            e('s_mov_b64 s[%d:%d], s[%d:%d]' % (64 + 2 * (8 + i), 65 + 2 * (8 + i), 64 + 2 * (4 + i), 65 + 2 * (4 + i)))
    e('s_mov_b32 s%d, 0' % sGIVEN)
    e('s_add_u32 s%d, s%d, %d' % (sOFB, sOFB, 4 * 9216))
    for i in range(80):
        e('v_accvgpr_read_b32 v%d, a%d' % (vQ + i, aQN + i))
    for i in range(72):
        e('v_accvgpr_write_b32 a%d, v%d' % (aQN + i, PK + i))
    e('s_branch K1_A')
    P.block('k1_ST')
    e('K1_ST:')
    e('s_mul_i32 s%d, s%d, %d' % (sT3, sPAR, 2 * 9216))
    e('s_add_u32 s%d, s%d, s%d' % (sT3, sT3, sOT + 4))
    for hd in (1, 0):
        if hd == 0: e('s_sub_u32 s%d, s%d, %d' % (sOFB, sOFB, 4 * 9216))
        for qt in range(5):
            e('s_add_u32 s%d, s%d, s%d' % (sT1, (sOT + qt) if qt < 4 else sT3, sOFB))
            for u in range(4 if qt < 4 else 2):
                k = 4 * qt + u
                src = vr(PK + 4 * k) if hd == 1 else ar(aQN + 4 * k)
                if u: e('s_add_u32 s%d, s%d, 9216' % (sT1, sT1))
                e('buffer_store_dwordx4 %s, v7, %s, s%d offen%s' % (src, srd(S_WS), sT1, spol), tag='ost')
    e('s_branch K1_FIN')

    P.block('k1_FB')
    e('K1_FB:')
    e('s_waitcnt vmcnt(0) lgkmcnt(0)')
    e('s_barrier')
    e('v_lshlrev_b32 v60, 8, v3')
    e('v_lshlrev_b32 v61, 4, v4')
    e('v_add_u32 v60, v60, v61')
    e('s_lshl_b32 s%d, s%d, 18' % (sT0, sHEAD))
    e('s_mov_b32 s%d, 64' % sCNT)
    for qt in R: e('v_mov_b32 v%d, 0xff800000' % N(qt, 0))
    P.block('k1_FBL')
    e('K1_FBL:')
    for ds in range(4):
        e('buffer_load_dwordx4 %s, v60, %s, s%d offen offset:%d' % (vr(vVR + 4 * ds), srd(S_K), sT0, ds * 64))
    for ds in range(4):
        for qt in R:
            D = vr(vSF + 8 * qt)
            e('v_mfma_f32_16x16x32_bf16 %s, %s, %s, %s' % (D, vr(vVR + 4 * ds), Qf(qt, ds), D if ds else '0'))
    for qt in R:
        e('v_max3_f32 v%d, v%d, v%d, v%d' % (N(qt, 0), N(qt, 0), S(qt, 0), S(qt, 1)))
    for qt in R:
        e('v_max3_f32 v%d, v%d, v%d, v%d' % (N(qt, 0), N(qt, 0), S(qt, 2), S(qt, 3)))
    e('s_add_u32 s%d, s%d, 4096' % (sT0, sT0))
    e('s_sub_u32 s%d, s%d, 1' % (sCNT, sCNT))
    e('s_cmp_lg_u32 s%d, 0' % sCNT)
    e('s_cbranch_scc1 K1_FBL')
    P.block('k1_FB2')
    xreduce_max()
    e('s_mov_b32 s%d, 1' % sGIVEN)
    e('s_lshl_b32 s%d, s%d, 18' % (sKO, sHEAD))
    e('s_lshl_b32 s%d, s%d, 18' % (sVO, sHEAD))
    for G in (kdma(0, 'p0'), vdma(0, 'p0'), kdma(1, 'p1'), vdma(1, 'p1')) + ((kdma(2, 'p2'),) if int(P.opt.get('kahead', 3)) == 3 else ()):
        for g in G: emit_item_groups(g)
    emit_c0_early()
    P.waitvm(['p0'])
    e('s_barrier')
    e('s_branch K1_A')
    P.block('k1_end')
    e('K1_FIN:')
    if fused:
        e('s_waitcnt vmcnt(0)')
        e('s_barrier')
        e('s_cmp_lg_u32 s%d, 0' % sW)
        e('s_cbranch_scc1 K1_NOC')
        e('s_lshl_b32 s%d, s%d, 3' % (sT0, sP))
        e('s_add_u32 s%d, s%d, s%d' % (sT0, sT0, sB))
        e('s_lshl_b32 s%d, s%d, 2' % (sT0, sT0))
        e('v_mov_b32 v60, s%d' % sT0)
        e('v_mov_b32 v61, 1')
        e('v_cmp_eq_u32 vcc, 0, v2')
        e('s_and_saveexec_b64 s[62:63], vcc')
        e('buffer_atomic_add v61, v60, %s, 0 offen sc1' % srd(S_WO))
        e('s_mov_b64 exec, s[62:63]')
        e('K1_NOC:')
    if getattr(P, 'prof', False):
        e('s_memrealtime s[98:99]')
        e('s_waitcnt lgkmcnt(0)')
        for i in range(16):
            src = (64 + 2 * i) if i < 12 else {12: 96, 13: 98, 14: 100, 15: 101}[i]
            e('v_mov_b32 v%d, s%d' % (64 + i, src))
        e('s_lshl_b32 s37, s2, 2')
        e('s_add_u32 s37, s37, s%d' % sW)
        if P.opt.get('ist'):
            e('s_lshl_b32 s38, s37, 8')
            e('v_lshlrev_b32 v61, 2, v2')
            e('v_add_u32 v61, s38, v61')
            e('s_add_u32 s8, s61, 0x4200000')
            e('s_addc_u32 s9, s55, 0')
            e('s_mov_b32 s10, 0x100000')
            e('s_mov_b32 s11, 0x00020000')
            e('buffer_store_dword v1, v61, s[8:11], 0 offen')
        e('s_lshl_b32 s37, s37, 6')
        e('v_mov_b32 v60, s37')
        e('s_add_u32 s8, s61, 0x4000000')
        e('s_addc_u32 s9, s55, 0')
        e('s_mov_b32 s10, 0x100000')
        e('s_mov_b32 s11, 0x00020000')
        e('v_cmp_eq_u32 vcc, 0, v2')
        e('s_and_saveexec_b64 s[62:63], vcc')
        e('s_cbranch_execz %s' % ('K1_PRE2' if fused else 'K1_DONE'))
        for i in range(4):
            e('buffer_store_dwordx4 v[%d:%d], v60, s[8:11], 0 offen offset:%d' % (64 + 4 * i, 67 + 4 * i, 16 * i))
    if fused:
        e('K1_PRE2:')
        e('s_mov_b64 exec, -1')
        e('s_branch K2_START')
    e('K1_DONE:')
    e('s_endpgm')

    pre = ['k1_pre', 'k1_q0', 'k1_qloop', 'k1_qloop', 'k1_qtail', 'k1_fx']
    paths = []
    for par in range(2):
        head = ['k1_A', 'k1_Amax', 'k1_A2', 'k1_B', 'k1_L1', 'k1_L2', 'k1_L1', 'k1_L2', 'k1_L1', 'k1_T', 'k1_E', 'k1_E%d' % par]
        paths.append(pre + ['k1_fx%d' % par, 'k1_asetup'] + head + ['k1_F%d' % par, 'k1_N', 'k1_N2'] + head + ['k1_F%d' % par, 'k1_N', 'k1_ST'])
        paths.append(pre + ['k1_fx%d' % par, 'k1_asetup'] + head + ['k1_FB', 'k1_FBL', 'k1_FBL', 'k1_FB2', 'k1_A', 'k1_A2', 'k1_B', 'k1_L1', 'k1_T'])
    return paths
```

```python
from asmlib import *

WF_OFF = 0x2400000

def gen_k2(P, name='oproj_kernel', fused=False):
    P.block('k2_pre')
    e = P.e
    pol = 'sc1' if fused else ''
    if not fused:
        e('.p2align 8')
        e('.globl %s' % name)
        e('.type %s,@function' % name)
        e('%s:' % name)
        e('s_cmp_ge_u32 s2, 256')
        e('s_cbranch_scc1 K2_DONE')
    e('K2_START:')
    e('s_load_dwordx2 s[36:37], s[0:1], 88')
    e('s_load_dwordx2 s[4:5], s[0:1], 96')
    e('s_load_dwordx2 s[6:7], s[0:1], 80')
    e('v_lshrrev_b32 v1, 6, v0')
    e('v_and_b32 v2, 63, v0')
    e('v_readfirstlane_b32 s20, v1')
    e('v_lshlrev_b32 v3, 4, v2')
    e('s_and_b32 s21, s2, 7')
    e('s_lshr_b32 s22, s2, 3')
    e('s_lshr_b32 s23, s21, 2')
    e('s_and_b32 s24, s21, 2')
    e('s_lshl_b32 s24, s24, 1')
    e('s_and_b32 s25, s22, 3')
    e('s_add_u32 s24, s24, s25')
    e('s_lshl_b32 s38, s23, 3')
    e('s_add_u32 s38, s38, s24')
    e('s_lshl_b32 s24, s24, 1')
    e('s_and_b32 s25, s21, 1')
    e('s_add_u32 s24, s24, s25')
    e('s_lshr_b32 s25, s22, 2')
    e('s_waitcnt lgkmcnt(0)')
    e('s_lshl_b32 s26, s23, 4')
    e('s_add_u32 s26, s26, s24')
    e('s_mul_i32 s26, s26, %d' % (128 * 9216))
    e('s_add_u32 s8, s4, s26')
    e('s_addc_u32 s9, s5, 0')
    e('s_mov_b32 s10, %d' % (128 * 9216))
    e('s_mov_b32 s11, 0x00020000')
    e('s_lshl_b32 s26, s23, 3')
    e('s_add_u32 s26, s26, s25')
    e('s_mul_i32 s26, s26, %d' % (128 * 5120))
    e('s_add_u32 s26, s26, %d' % WF_OFF)
    e('s_add_u32 s12, s4, s26')
    e('s_addc_u32 s13, s5, 0')
    e('s_mov_b32 s14, %d' % (128 * 5120))
    e('s_mov_b32 s15, 0x00020000')
    e('s_mov_b32 s16, s6')
    e('s_mov_b32 s17, s7')
    e('s_mov_b32 s18, %d' % (8 * 288 * 1280 * 2))
    e('s_mov_b32 s19, 0x00020000')
    if getattr(P,'prof',False): e('s_memtime s[52:53]'); e('s_memrealtime s[48:49]'); e('s_waitcnt lgkmcnt(0)')
    if fused:
        e('s_mov_b32 s40, s36')
        e('s_mov_b32 s41, s37')
        e('s_mov_b32 s42, 256')
        e('s_mov_b32 s43, 0x00020000')
        e('s_lshl_b32 s38, s38, 2')
        e('s_lshl_b32 s39, s23, 2')
        e('s_add_u32 s39, s39, 64')
        e('v_mov_b32 v10, s38')
        e('v_mov_b32 v11, s39')
        e('s_mov_b32 s39, 0x10000')
        e('s_cmp_lg_u32 s20, 0')
        e('s_cbranch_scc1 K2_GO')
        e('K2_POLL:')
        e('buffer_load_dword v12, v10, s[40:43], 0 offen sc1')
        e('buffer_load_dword v13, v11, s[40:43], 0 offen sc1')
        e('s_waitcnt vmcnt(0)')
        e('v_readfirstlane_b32 s37, v12')
        e('v_readfirstlane_b32 s38, v13')
        e('s_cmp_eq_u32 s37, 16')
        e('s_cselect_b32 s37, 1, 0')
        e('s_cmp_eq_u32 s38, 128')
        e('s_cselect_b32 s38, 1, 0')
        e('s_and_b32 s37, s37, s38')
        e('s_cmp_eq_u32 s37, 1')
        e('s_cbranch_scc1 K2_GO')
        e('s_sub_u32 s39, s39, 1')
        e('s_cmp_eq_u32 s39, 0')
        e('s_cbranch_scc1 K2_GO')
        e('s_sleep %s' % P.opt.get('sleep', '16'))
        e('s_branch K2_POLL')
        e('K2_GO:')
        e('s_barrier')
    e('s_mul_i32 s30, s20, 9216')
    e('s_mul_i32 s31, s20, 5120')
    ACC = 64
    def acc(t, qt):
        r = ACC + 4 * (t * 9 + qt); return 'v[%d:%d]' % (r, r + 3)
    def fA(st, t):
        r = st * 56 + 4 * t; return 'a[%d:%d]' % (r, r + 3)
    def fB(st, qt):
        r = st * 56 + 20 + 4 * qt; return 'a[%d:%d]' % (r, r + 3)
    def loads(st):
        L = []
        L.append(['buffer_load_dwordx4 %s, v3, s[12:15], s31 offen %s' % (fA(st, 0), pol)])
        L.append(['s_add_u32 s32, s30, 4096', 's_add_u32 s33, s30, 8192', 'buffer_load_dwordx4 %s, v3, s[8:11], s30 offen %s' % (fB(st, 0), pol)])
        for qt in range(1, 4):
            L.append(['buffer_load_dwordx4 %s, v3, s[8:11], s30 offen offset:%d %s' % (fB(st, qt), qt * 1024, pol)])
        for qt in range(4, 8):
            L.append(['buffer_load_dwordx4 %s, v3, s[8:11], s32 offen offset:%d %s' % (fB(st, qt), (qt - 4) * 1024, pol)])
        L.append(['buffer_load_dwordx4 %s, v3, s[8:11], s33 offen %s' % (fB(st, 8), pol)])
        for t in range(1, 4):
            L.append(['buffer_load_dwordx4 %s, v3, s[12:15], s31 offen offset:%d %s' % (fA(st, t), t * 1024, pol)])
        L.append(['s_add_u32 s34, s31, 4096', 'buffer_load_dwordx4 %s, v3, s[12:15], s34 offen %s' % (fA(st, 4), pol),
                  's_add_u32 s30, s30, %d' % (4 * 9216), 's_add_u32 s31, s31, %d' % (4 * 5120)])
        return L
    for st in range(3):
        for grp in loads(st):
            for t in grp: e(t)
    for r in range(ACC, ACC + 180):
        e('v_mov_b32 v%d, 0' % r)
    e('s_mov_b32 s35, 8')
    if getattr(P,'prof',False): e('s_memtime s[54:55]'); e('s_waitcnt lgkmcnt(0)')
    P.block('k2_loop')
    e('K2_LOOP:')
    for st in range(4):
        L = loads((st + 3) % 4)
        g = 0; li = 0
        for t in range(5):
            for qt in range(9):
                e('v_mfma_f32_16x16x32_bf16 %s, %s, %s, %s' % (acc(t, qt), fA(st, t), fB(st, qt), acc(t, qt)))
                if g % 3 == 1 and li < len(L):
                    for x in L[li]: e(x)
                    li += 1
                g += 1
        assert li == len(L)
    e('s_sub_u32 s35, s35, 1')
    e('s_cmp_lg_u32 s35, 0')
    e('s_cbranch_scc1 K2_LOOP')
    P.block('k2_mid')
    if getattr(P,'prof',False): e('s_memtime s[56:57]'); e('s_waitcnt lgkmcnt(0)')
    e('s_waitcnt vmcnt(0)')
    units = {0: [('P', 0, q) for q in range(0, 5)] + [('S', 4, 0)],
             1: [('P', 0, q) for q in range(5, 9)] + [('P', 2, 0)] + [('S', 4, 1)],
             2: [('P', 2, q) for q in range(1, 5)] + [('S', 4, q) for q in (2, 3, 4)],
             3: [('P', 2, q) for q in range(5, 9)] + [('S', 4, q) for q in (5, 6, 7, 8)]}
    owner = {}
    for w, us in units.items():
        for (k, t, q) in us:
            owner[(t, q)] = w
            if k == 'P': owner[(t + 1, q)] = w
    assert len(owner) == 45
    e('v_and_b32 v4, 15, v2')
    e('v_lshrrev_b32 v5, 4, v2')
    e('s_mul_i32 s26, s24, 144')
    e('v_add_u32 v4, s26, v4')
    e('s_movk_i32 s27, 2560')
    e('v_mul_lo_u32 v4, v4, s27')
    e('s_mul_i32 s26, s23, 1280')
    e('s_mul_i32 s27, s25, 160')
    e('s_add_u32 s26, s26, s27')
    e('v_add_u32 v4, s26, v4')
    e('v_lshlrev_b32 v6, 4, v5')
    e('v_add_u32 v6, v4, v6')
    e('v_lshlrev_b32 v7, 3, v5')
    e('v_add_u32 v7, v4, v7')
    e('v_add_u32 v7, 128, v7')
    e('v_add_u32 v8, 0x10000, v3')
    e('v_add_u32 v9, 0x20000, v3')
    for w in range(1, 4):
        e('s_cmp_eq_u32 s20, %d' % w)
        e('s_cbranch_scc1 K2_W%d' % w)
    paths = []
    def ldsaddr(off):
        if off < 0x10000: return 'v3', off
        if off < 0x20000: return 'v8', off - 0x10000
        return 'v9', off - 0x20000
    for w in range(4):
        P.block('k2_w%d' % w)
        e('K2_W%d:' % w)
        for t in range(5):
            for qt in range(9):
                o = owner[(t, qt)]
                if o == w: continue
                idx = w if w < o else w - 1
                a, off = ldsaddr(((t * 9 + qt) * 3 + idx) * 1024)
                e('ds_write_b128 %s, %s offset:%d' % (a, acc(t, qt), off))
        e('s_waitcnt lgkmcnt(0)')
        e('s_barrier')
        tmp = 16
        slot = 0
        def sum_tile(t, qt):
            nonlocal slot
            base = tmp + 12 * (slot % 4); slot += 1
            for idx in range(3):
                a, off = ldsaddr(((t * 9 + qt) * 3 + idx) * 1024)
                e('ds_read_b128 v[%d:%d], %s offset:%d' % (base + 4 * idx, base + 4 * idx + 3, a, off))
            return base
        tiles = []
        for (k, t, q) in units[w]:
            tiles.append((k, t, q))
        pend = []
        def issue(u):
            k, t, q = u
            b0 = sum_tile(t, q)
            b1 = sum_tile(t + 1, q) if k == 'P' else None
            return (u, b0, b1)
        def finish(pu):
            (k, t, q), b0, b1 = pu
            for (tt, b) in ((t, b0), (t + 1, b1)):
                if b is None: continue
                r = ACC + 4 * (tt * 9 + q)
                for i in range(4):
                    e('v_add_f32 v%d, v%d, v%d' % (b + i, b + i, b + 4 + i))
                    e('v_add_f32 v%d, v%d, v%d' % (r + i, r + i, b + 8 + i))
                for i in range(4):
                    e('v_add_f32 v%d, v%d, v%d' % (r + i, r + i, b + i))
            r0 = ACC + 4 * (t * 9 + q)
            if k == 'P':
                r1 = ACC + 4 * ((t + 1) * 9 + q)
                e('v_cvt_pk_bf16_f32 v10, v%d, v%d' % (r0, r0 + 1))
                e('v_cvt_pk_bf16_f32 v11, v%d, v%d' % (r0 + 2, r0 + 3))
                e('v_cvt_pk_bf16_f32 v12, v%d, v%d' % (r1, r1 + 1))
                e('v_cvt_pk_bf16_f32 v13, v%d, v%d' % (r1 + 2, r1 + 3))
                e('s_mov_b32 s26, %d' % (q * 16 * 2560 + (t // 2) * 64))
                e('buffer_store_dwordx4 v[10:13], v6, s[16:19], s26 offen')
            else:
                e('v_cvt_pk_bf16_f32 v14, v%d, v%d' % (r0, r0 + 1))
                e('v_cvt_pk_bf16_f32 v15, v%d, v%d' % (r0 + 2, r0 + 3))
                e('s_mov_b32 s26, %d' % (q * 16 * 2560))
                e('buffer_store_dwordx2 v[14:15], v7, s[16:19], s26 offen')
        prev = None
        for u in tiles:
            cur = issue(u)
            if prev is not None: finish(prev)
            prev = cur
        finish(prev)
        if getattr(P,'prof',False):
            e('s_memtime s[58:59]'); e('s_memrealtime s[50:51]'); e('s_waitcnt lgkmcnt(0)')
            for i, sr in enumerate((52, 54, 56, 58, 48, 50)): e('v_mov_b32 v%d, s%d' % (16 + i, sr))
            e('s_lshl_b32 s37, s2, 2'); e('s_add_u32 s37, s37, s20'); e('s_lshl_b32 s37, s37, 6'); e('v_mov_b32 v10, s37')
            e('s_add_u32 s8, s4, 0x4100000'); e('s_addc_u32 s9, s5, 0'); e('s_mov_b32 s10, 0x100000')
            e('v_cmp_eq_u32 vcc, 0, v2'); e('s_and_saveexec_b64 s[62:63], vcc'); e('s_cbranch_execz K2_DONE')
            e('buffer_store_dwordx4 v[16:19], v10, s[8:11], 0 offen'); e('buffer_store_dwordx4 v[20:23], v10, s[8:11], 0 offen offset:16')
        e('s_endpgm')
        paths.append(['k2_pre', 'k2_loop', 'k2_loop', 'k2_mid', 'k2_w%d' % w])
    P.block('k2_end')
    e('K2_DONE:')
    e('s_endpgm')
    desc = '''.amdhsa_kernel %s
  .amdhsa_next_free_vgpr 512
  .amdhsa_next_free_sgpr 64
  .amdhsa_accum_offset 256
  .amdhsa_group_segment_fixed_size 0
  .amdhsa_kernarg_size 104
  .amdhsa_user_sgpr_count 2
  .amdhsa_user_sgpr_kernarg_segment_ptr 1
  .amdhsa_system_sgpr_workgroup_id_x 1
.end_amdhsa_kernel
''' % name
    return paths, desc
```

```python
from asmlib import *
WF_OFF = 0x2400000
XP_OFF = 0x3000000
NST = 16

def gen_k3(P, standalone=True, name='oproj_kernel'):
    e = P.e
    prof = getattr(P, 'prof', False)
    pol = P.opt.get('opol', 'sc1')
    def emit_groups(G):
        for g in G:
            for x in g:
                if isinstance(x, tuple): e(x[0], tag=x[1])
                else: e(x)
    P.block('k3_pre')
    if standalone:
        e('.p2align 8')
        e('.globl %s' % name)
        e('.type %s,@function' % name)
        e('%s:' % name)
        e('s_cmp_ge_u32 s2, 256')
        e('s_cbranch_scc1 K3_DONE')
        e('v_lshrrev_b32 v1, 6, v0')
        e('v_and_b32 v2, 63, v0')
        e('v_readfirstlane_b32 s32, v1')
        e('v_lshlrev_b32 v7, 4, v2')
        e('s_and_b32 s37, s2, 7')
        e('s_lshr_b32 s38, s2, 3')
        e('s_lshr_b32 s34, s37, 2')
        e('s_and_b32 s39, s37, 2')
        e('s_lshl_b32 s39, s39, 1')
        e('s_and_b32 s40, s38, 3')
        e('s_add_u32 s35, s39, s40')
        e('s_and_b32 s39, s37, 1')
        e('s_lshl_b32 s39, s39, 3')
        e('s_lshr_b32 s40, s38, 2')
        e('s_add_u32 s36, s39, s40')
    e('K3_START:')
    e('s_load_dwordx2 s[4:5], s[0:1], 96')
    e('s_load_dwordx2 s[6:7], s[0:1], 80')
    e('s_load_dwordx2 s[62:63], s[0:1], 88')
    e('s_lshr_b32 s41, s36, 3')
    e('s_lshr_b32 s42, s36, 1')
    e('s_and_b32 s42, s42, 3')
    e('s_and_b32 s43, s36, 1')
    e('s_lshr_b32 s44, s32, 1')
    e('s_and_b32 s45, s32, 1')
    e('s_lshl_b32 s46, s35, 1')
    e('s_add_u32 s46, s46, s41')
    e('s_lshl_b32 s47, s42, 1')
    e('s_add_u32 s47, s47, s45')
    e('s_waitcnt lgkmcnt(0)')
    if prof: e('s_memtime s[64:65]'); e('s_memrealtime s[72:73]'); e('s_waitcnt lgkmcnt(0)')
    e('s_lshl_b32 s37, s34, 4')
    e('s_add_u32 s37, s37, s46')
    e('s_lshl_b32 s37, s37, 7')
    e('s_lshl_b32 s38, s43, 6')
    e('s_add_u32 s37, s37, s38')
    e('s_mul_i32 s37, s37, 9216')
    e('s_add_u32 s8, s4, s37')
    e('s_addc_u32 s9, s5, 0')
    e('s_mov_b32 s10, %d' % (64 * 9216))
    e('s_mov_b32 s11, 0x00020000')
    e('s_lshl_b32 s37, s34, 3')
    e('s_add_u32 s37, s37, s47')
    e('s_lshl_b32 s37, s37, 7')
    e('s_add_u32 s37, s37, s38')
    e('s_mul_i32 s37, s37, 5120')
    e('s_add_u32 s37, s37, %d' % WF_OFF)
    e('s_add_u32 s12, s4, s37')
    e('s_addc_u32 s13, s5, 0')
    e('s_mov_b32 s14, %d' % (64 * 5120))
    e('s_mov_b32 s15, 0x00020000')
    e('s_mov_b32 s16, s6')
    e('s_mov_b32 s17, s7')
    e('s_mov_b32 s18, %d' % (8 * 288 * 1280 * 2))
    e('s_mov_b32 s19, 0x00020000')
    e('s_lshl_b32 s37, s34, 3')
    e('s_add_u32 s37, s37, s35')
    e('s_lshl_b32 s37, s37, 3')
    e('s_lshr_b32 s38, s36, 1')
    e('s_add_u32 s48, s37, s38')
    e('s_mul_i32 s37, s48, 94208')
    e('s_add_u32 s37, s37, %d' % XP_OFF)
    e('s_add_u32 s20, s4, s37')
    e('s_addc_u32 s21, s5, 0')
    e('s_mov_b32 s22, 94208')
    e('s_mov_b32 s23, 0x00020000')
    e('s_mov_b32 s28, s62')
    e('s_mov_b32 s29, s63')
    e('s_mov_b32 s30, 256')
    e('s_mov_b32 s31, 0x00020000')
    e('s_mul_i32 s49, s32, 9216')
    e('s_mov_b32 s50, s49')
    e('s_mul_i32 s52, s44, 5120')
    e('s_mul_i32 s37, s44, 9216')
    e('v_add_u32 v8, s37, v7')
    e('v_add_u32 v9, %d, v8' % (2 * 36864))
    blocks = ['k3_pre']
    if not standalone:
        P.block('k3_sync'); blocks.append('k3_sync')
        e('s_lshl_b32 s37, s34, 3')
        e('s_add_u32 s37, s37, s35')
        e('s_lshl_b32 s37, s37, 1')
        e('s_add_u32 s37, s37, s43')
        e('s_lshl_b32 s37, s37, 2')
        e('s_lshl_b32 s38, s34, 2')
        e('s_add_u32 s38, s38, 128')
        e('v_mov_b32 v10, s37')
        e('v_mov_b32 v11, s38')
        e('s_mov_b32 s39, 0x10000')
        e('K3_POLL:')
        e('buffer_load_dword v12, v10, s[28:31], 0 offen sc1')
        e('buffer_load_dword v13, v11, s[28:31], 0 offen sc1')
        e('s_waitcnt vmcnt(0)')
        e('v_readfirstlane_b32 s37, v12')
        e('v_readfirstlane_b32 s38, v13')
        e('s_cmp_eq_u32 s37, 8')
        e('s_cselect_b32 s37, 1, 0')
        e('s_cmp_eq_u32 s38, 128')
        e('s_cselect_b32 s38, 1, 0')
        e('s_and_b32 s37, s37, s38')
        e('s_cmp_eq_u32 s37, 1')
        e('s_cbranch_scc1 K3_GO')
        e('s_sub_u32 s39, s39, 1')
        e('s_cmp_eq_u32 s39, 0')
        e('s_cbranch_scc1 K3_GO')
        e('s_sleep 2')
        e('s_branch K3_POLL')
        e('K3_GO:')
        e('s_barrier')
    P.block('k3_pre2'); blocks.append('k3_pre2')
    def bdma(slot, tag):
        G = []
        for i in range(9):
            g = []
            if i % 4 == 0:
                g.append('s_add_u32 m0, s49, %d' % (slot * 36864 + i * 1024))
                if i: g.append('s_add_u32 s51, s50, %d' % (i * 1024))
            g.append(('buffer_load_dwordx4 v7, s[8:11], s%d offen offset:%d %s lds' % (51 if i >= 4 else 50, (i % 4) * 1024, pol), tag))
            G.append(g)
        G[-1].append('s_add_u32 s50, s50, 36864')
        return G
    ACC = 64
    def acc(t, qt):
        r = ACC + 4 * (t * 9 + qt); return 'v[%d:%d]' % (r, r + 3)
    def fA(b, t):
        r = b * 20 + 4 * t; return 'a[%d:%d]' % (r, r + 3)
    def fB(b, qt):
        r = 80 + b * 36 + 4 * qt; return 'a[%d:%d]' % (r, r + 3)
    def aload(b):
        L = []
        for t in range(4):
            L.append([('buffer_load_dwordx4 %s, v7, s[12:15], s52 offen offset:%d %s' % (fA(b, t), t * 1024, pol), 'a')])
        L.append(['s_add_u32 s53, s52, 4096', ('buffer_load_dwordx4 %s, v7, s[12:15], s53 offen %s' % (fA(b, 4), pol), 'a'), 's_add_u32 s52, s52, 10240'])
        return L
    def bread(slot, half, b):
        va = 'v8' if slot < 2 else 'v9'
        o = (slot % 2) * 36864 + half * 2 * 9216
        return ['ds_read_b128 %s, %s offset:%d' % (fB(b, qt), va, o + qt * 1024) for qt in range(9)]
    emit_groups(bdma(0, 'b0'))
    emit_groups(aload(0))
    emit_groups(bdma(1, 'b1'))
    emit_groups(aload(1))
    emit_groups(bdma(2, 'b2'))
    emit_groups(aload(2))
    emit_groups(bdma(3, 'b3'))
    P.waitvm(['b0'])
    e('s_barrier')
    for x in bread(0, 0, 0): e(x)
    if prof: e('s_memtime s[66:67]'); e('s_waitcnt lgkmcnt(0)')

    def kstep(j, first=False):
        s, half = (j // 2) % 4, j % 2
        fill = [[] for _ in range(45)]
        cap = [2] * 45
        def place(g, items, step=1):
            for x in items:
                while g < 44 and cap[g] <= 0: g += 1
                fill[g].append(x); cap[g] -= 1
                g += step - 1 if False else 0
            return g
        gb = 0
        if half == 1:
            fill[1].append(('BAR', (s + 1) % 4)); cap[1] -= 2; gb = 2
        nj = j + 1
        rd = bread((nj // 2) % 4, nj % 2, nj % 2)
        g = max(gb, 2)
        for x in rd:
            g = place(g, [x]); g += 2
        g = 4
        for grp in aload((j + 3) % 4):
            g = place(g, grp); g += 4
        if half == 1:
            g = 3
            for grp in bdma(s, 'b%d' % s):
                g = place(g, grp); g += 4
        gi = 0
        for t in range(5):
            for qt in range(9):
                a = acc(t, qt)
                e('v_mfma_f32_16x16x32_bf16 %s, %s, %s, %s' % (a, fA(j % 4, t), fB(j % 2, qt), '0' if first else a))
                for x in fill[gi]:
                    if isinstance(x, tuple) and x[0] == 'BAR':
                        P.waitvm(['b%d' % x[1]])
                        e('s_waitcnt lgkmcnt(0)')
                        e('s_barrier')
                    elif isinstance(x, tuple): e(x[0], tag=x[1])
                    else: e(x)
                gi += 1
    P.block('k3_first');
    kstep(0, first=True)
    for j in range(1, 8): kstep(j)
    e('s_mov_b32 s54, %d' % (NST // 4 - 1))
    P.block('k3_loop')
    e('K3_LOOP:')
    for j in range(8): kstep(j)
    e('s_sub_u32 s54, s54, 1')
    e('s_cmp_lg_u32 s54, 0')
    e('s_cbranch_scc1 K3_LOOP')
    P.block('k3_mid')
    if prof: e('s_memtime s[68:69]'); e('s_waitcnt lgkmcnt(0)')
    e('s_waitcnt vmcnt(0) lgkmcnt(0)')
    e('s_barrier')
    def owner(t, qt): return 0 if (qt <= 3 or (qt == 4 and t <= 1)) else 1
    own = {k: [(t, qt) for qt in range(9) for t in range(5) if owner(t, qt) == k] for k in range(2)}
    e('s_mul_i32 s37, s32, 23552')
    e('v_add_u32 v10, s37, v7')
    e('s_xor_b32 s38, s32, 2')
    e('s_mul_i32 s37, s38, 23552')
    e('v_add_u32 v11, s37, v7')
    e('v_and_b32 v4, 15, v2')
    e('v_lshrrev_b32 v5, 4, v2')
    e('s_mul_i32 s37, s46, 144')
    e('v_add_u32 v4, s37, v4')
    e('s_movk_i32 s38, 2560')
    e('v_mul_lo_u32 v4, v4, s38')
    e('s_mul_i32 s37, s34, 1280')
    e('s_mul_i32 s38, s47, 160')
    e('s_add_u32 s37, s37, s38')
    e('v_add_u32 v4, s37, v4')
    e('v_lshlrev_b32 v6, 4, v5')
    e('v_add_u32 v6, v4, v6')
    e('v_lshlrev_b32 v3, 3, v5')
    e('v_add_u32 v3, v4, v3')
    e('v_add_u32 v3, 128, v3')
    e('s_mul_i32 s55, s32, 23552')
    e('s_lshr_b32 s37, s48, 5')
    e('s_lshl_b32 s37, s37, 2')
    e('s_add_u32 s37, s37, 160')
    e('v_mov_b32 v12, s37')
    e('s_and_b32 s37, s48, 31')
    e('s_lshl_b32 s56, 1, s37')
    e('v_mov_b32 v13, s56')
    e('s_cmp_eq_u32 s44, 1')
    e('s_cbranch_scc1 K3_K1')
    paths = []
    for kk in range(2):
        P.block('k3_r%d' % kk)
        if kk: e('K3_K1:')
        for i, (t, qt) in enumerate(own[1 - kk]):
            e('ds_write_b128 v10, %s offset:%d' % (acc(t, qt), i * 1024))
        e('s_waitcnt lgkmcnt(0)')
        e('s_barrier')
        n = len(own[kk])
        def rd(i): e('ds_read_b128 v[%d:%d], v11 offset:%d' % (16 + 4 * (i % 12), 19 + 4 * (i % 12), i * 1024))
        for i in range(min(8, n)): rd(i)
        for i, (t, qt) in enumerate(own[kk]):
            r = ACC + 4 * (t * 9 + qt); b = 16 + 4 * (i % 12)
            for c in range(4): e('v_add_f32 v%d, v%d, v%d' % (r + c, r + c, b + c))
            if i + 8 < n: rd(i + 8)
        e('s_cmp_eq_u32 s43, 0')
        e('s_cbranch_scc1 K3_FIN%d' % kk)
        P.block('k3_s%d' % kk)
        for i, (t, qt) in enumerate(own[kk]):
            if i % 4 == 0: e('s_add_u32 s37, s55, %d' % (i * 1024))
            e('buffer_store_dwordx4 %s, v7, s[20:23], s37 offen offset:%d sc1' % (acc(t, qt), (i % 4) * 1024), tag='x')
        e('s_waitcnt vmcnt(0)')
        e('s_barrier')
        e('s_cmp_lg_u32 s32, 0')
        e('s_cbranch_scc1 K3_DONE')
        e('v_cmp_eq_u32 vcc, 0, v2')
        e('s_and_saveexec_b64 s[58:59], vcc')
        e('s_cbranch_execz K3_DONE')
        e('buffer_atomic_or v13, v12, s[28:31], 0 offen sc1')
        e('s_endpgm')
        P.block('k3_f%d' % kk)
        e('K3_FIN%d:' % kk)
        e('s_mov_b32 s39, 0x10000')
        e('K3_P2_%d:' % kk)
        e('buffer_load_dword v14, v12, s[28:31], 0 offen sc1')
        e('s_waitcnt vmcnt(0)')
        e('v_readfirstlane_b32 s37, v14')
        e('s_and_b32 s37, s37, s56')
        e('s_cbranch_scc1 K3_G2_%d' % kk)
        e('s_sub_u32 s39, s39, 1')
        e('s_cmp_eq_u32 s39, 0')
        e('s_cbranch_scc1 K3_G2_%d' % kk)
        e('s_sleep 1')
        e('s_branch K3_P2_%d' % kk)
        e('K3_G2_%d:' % kk)
        P.block('k3_g%d' % kk)
        for i in range(n):
            if i % 4 == 0: e('s_add_u32 s37, s55, %d' % (i * 1024))
            e('buffer_load_dwordx4 a[%d:%d], v7, s[20:23], s37 offen offset:%d sc1' % (4 * i, 4 * i + 3, (i % 4) * 1024))
        idx = {tl: i for i, tl in enumerate(own[kk])}
        def addp(t, qt):
            i = idx[(t, qt)]; r = ACC + 4 * (t * 9 + qt)
            for c in range(4): e('v_accvgpr_read_b32 v%d, a%d' % (16 + c, 4 * i + c))
            for c in range(4): e('v_add_f32 v%d, v%d, v%d' % (r + c, r + c, 16 + c))
            return r
        sb = 0
        for qt in range(9):
            for t0 in (0, 2):
                if (t0, qt) in idx:
                    r0 = addp(t0, qt); r1 = addp(t0 + 1, qt)
                    d = 24 + 4 * (sb % 4); sb += 1
                    e('v_cvt_pk_bf16_f32 v%d, v%d, v%d' % (d, r0, r0 + 1))
                    e('v_cvt_pk_bf16_f32 v%d, v%d, v%d' % (d + 1, r0 + 2, r0 + 3))
                    e('v_cvt_pk_bf16_f32 v%d, v%d, v%d' % (d + 2, r1, r1 + 1))
                    e('v_cvt_pk_bf16_f32 v%d, v%d, v%d' % (d + 3, r1 + 2, r1 + 3))
                    e('s_mov_b32 s37, %d' % (qt * 16 * 2560 + (t0 // 2) * 64))
                    e('buffer_store_dwordx4 v[%d:%d], v6, s[16:19], s37 offen' % (d, d + 3))
            if (4, qt) in idx:
                r0 = addp(4, qt)
                d = 40 + 2 * (sb % 4); sb += 1
                e('v_cvt_pk_bf16_f32 v%d, v%d, v%d' % (d, r0, r0 + 1))
                e('v_cvt_pk_bf16_f32 v%d, v%d, v%d' % (d + 1, r0 + 2, r0 + 3))
                e('s_mov_b32 s37, %d' % (qt * 16 * 2560))
                e('buffer_store_dwordx2 v[%d:%d], v3, s[16:19], s37 offen' % (d, d + 1))
        if prof:
            e('s_memtime s[70:71]'); e('s_memrealtime s[74:75]'); e('s_waitcnt lgkmcnt(0)')
            for i, sr in enumerate((64, 66, 68, 70, 72, 74)): e('v_mov_b32 v%d, s%d' % (16 + i, sr))
            e('s_lshl_b32 s37, s2, 2'); e('s_add_u32 s37, s37, s32'); e('s_lshl_b32 s37, s37, 6'); e('v_mov_b32 v10, s37')
            e('s_add_u32 s8, s4, 0x4100000'); e('s_addc_u32 s9, s5, 0'); e('s_mov_b32 s10, 0x100000')
            e('v_cmp_eq_u32 vcc, 0, v2'); e('s_and_saveexec_b64 s[58:59], vcc'); e('s_cbranch_execz K3_DONE')
            e('buffer_store_dwordx4 v[16:19], v10, s[8:11], 0 offen'); e('buffer_store_dwordx4 v[20:23], v10, s[8:11], 0 offen offset:16')
        e('s_endpgm')
        base = blocks + ['k3_first', 'k3_loop', 'k3_loop', 'k3_mid', 'k3_r%d' % kk]
        paths.append(base + ['k3_s%d' % kk]); paths.append(base + ['k3_f%d' % kk, 'k3_g%d' % kk])
    P.block('k3_end')
    e('K3_DONE:')
    e('s_endpgm')
    desc = '''.amdhsa_kernel %s
  .amdhsa_next_free_vgpr 512
  .amdhsa_next_free_sgpr 102
  .amdhsa_accum_offset 256
  .amdhsa_group_segment_fixed_size 0
  .amdhsa_kernarg_size 104
  .amdhsa_user_sgpr_count 2
  .amdhsa_user_sgpr_kernarg_segment_ptr 1
  .amdhsa_system_sgpr_workgroup_id_x 1
.end_amdhsa_kernel
''' % name
    return paths, desc
```

```python
import sys
from asmlib import *
import k1, k1b, k1c, k2, k3

def main(out):
    P = Prog()
    P.prof = '-prof' in sys.argv or '-prof2' in sys.argv
    P.prof2 = '-prof2' in sys.argv
    P.opt = dict(a.split('=') for a in sys.argv[2:] if '=' in a)
    KN = 'concat_heads__gqa_block_cached__mha_block_cached__near_ridge_kernel' if P.opt.get('fused', '1') == '1' else 'attn_kernel'
    info = k1.gen_k1(P, name=KN)
    k1b.gen_fixup(P, info, None)
    T = k1b.gen_attn(P, info)
    paths = k1c.gen_emit(P, info, T)
    fused = P.opt.get('fused', '1') == '1'
    p2, d2 = k3.gen_k3(P) if P.opt.get('k2') == '3' else k2.gen_k2(P, fused=fused)
    if fused:
        p2 = [paths[0] + ['k1_end'] + p for p in p2]
    P.finalize(paths + p2, report=('-v' in sys.argv))
    for b in ('k1_qloop', 'k1_L1', 'k1_L2', 'k1_A2', 'k1_B', 'k1_T', 'k1_E0', 'k2_loop', 'k3_loop'):
        if b not in P.blocks: continue
        print(b, P.stats(b), 'est', P.est(b))
    ref = open('concat_heads__gqa_block_cached__mha_block_cached__near_ridge.s.ref').read()
    hdr = []
    for line in ref.splitlines():
        if line.startswith(';') and '@launch' not in line and 'Override' not in line and 'grid=ceil' not in line: hdr.append(line)
        if not line.startswith(';'): break
    txt = '\n'.join(hdr) + '\n'
    if fused:
        txt += '; @launch grid=(256,1,1) block=(256,1,1) lds=163840\n'
    else:
        txt += '; @launch kernel=attn_kernel grid=(256,1,1) block=(256,1,1) lds=163840\n'
        txt += '; @launch kernel=oproj_kernel grid=(256,1,1) block=(256,1,1) lds=147456\n'
    txt += '.amdgcn_target "amdgcn-amd-amdhsa--gfx950"\n.text\n'
    txt += P.emit()
    txt += 'CODE_END:\n'
    txt += '.section .rodata,"a"\n.p2align 6\n'
    txt += '.amdhsa_kernel %s' % KN + '''
  .amdhsa_next_free_vgpr 512
  .amdhsa_next_free_sgpr 102
  .amdhsa_accum_offset 256
  .amdhsa_group_segment_fixed_size 0
  .amdhsa_kernarg_size 104
  .amdhsa_user_sgpr_count 2
  .amdhsa_user_sgpr_kernarg_segment_ptr 1
  .amdhsa_system_sgpr_workgroup_id_x 1
.end_amdhsa_kernel
.p2align 6
'''
    if not fused: txt += d2
    open(out, 'w').write(txt)
    print('wrote', out, len(txt), 'bytes')

main(sys.argv[1])
```

```python
from asmlib import *
import math, struct

WF_OFF = 0x2400000
CSCALE = math.log2(math.e) / math.sqrt(128.0)
def f32bits(x): return struct.unpack('<I', struct.pack('<f', x))[0]

S_X, S_WQ, S_K, S_V, S_WS, S_WO = 8, 12, 16, 20, 24, 28
sW, sPAR, sP, sB, sHP = 32, 33, 34, 35, 36
sT0, sT1, sT2, sT3 = 37, 38, 39, 40
sXO, sWO_, sM4, sCNT, sM5, sWFO = 41, 42, 43, 44, 45, 46
sKO, sHEAD, sGIVEN, sOFB, sC, sBIG = 47, 48, 49, 50, 51, 52
sVO = 54
sOT = 56
def srd(b): return 's[%d:%d]' % (b, b + 3)
def vr(b, n=4): return 'v[%d:%d]' % (b, b + n - 1)
def ar(b, n=4): return 'a[%d:%d]' % (b, b + n - 1)

XB = 65536; XSLOT = 36864; WSLOT = 16384
vKD = 34
vVD = 38

KVPOL = ['nt']
def kdma(pslot, tag, soff=None):
    G = []
    for i in range(4):
        g = []
        if i == 0: g.append('s_add_u32 m0, s%d, %d' % (sM4, pslot * 16384))
        g.append(('buffer_load_dwordx4 v%d, %s, s%d offen offset:%d %s lds' % (vKD + i, srd(S_K), sKO, i * 1024, KVPOL[0]), tag))
        G.append(g)
    G[-1].append('s_add_u32 s%d, s%d, 16384' % (sKO, sKO))
    return G
def vdma(pslot, tag):
    G = []
    for i in range(4):
        g = []
        if i == 0: g.append('s_add_u32 m0, s%d, %d' % (sM4, 65536 + pslot * 16384))
        g.append(('buffer_load_dwordx4 v%d, %s, s%d offen offset:%d %s lds' % (vVD + i % 2, srd(S_V), sVO, i * 1024, KVPOL[0]), tag))
        G.append(g)
    G[-1].append('s_add_u32 s%d, s%d, 16384' % (sVO, sVO))
    return G

def gen_k1(P, name='attn_kernel'):
    KVPOL[0] = P.opt.get('kvpol', 'nt')
    spol = 'sc1' if P.opt.get('fused', '1') == '1' else P.opt.get('wfpol', '')
    e = P.e
    def emit_groups(G):
        for g in G:
            for x in g:
                if isinstance(x, tuple): e(x[0], tag=x[1])
                else: e(x)
    P.block('k1_pre')
    e('.p2align 8')
    e('.globl %s' % name)
    e('.type %s,@function' % name)
    e('%s:' % name)
    e('s_cmp_ge_u32 s2, 256')
    e('s_cbranch_scc1 K1_DONE')
    e('s_load_dwordx16 s[64:79], s[0:1], 0')
    e('s_load_dwordx8 s[80:87], s[0:1], 64')
    e('s_load_dwordx2 s[88:89], s[0:1], 96')
    e('v_lshrrev_b32 v1, 6, v0')
    e('v_and_b32 v2, 63, v0')
    e('v_readfirstlane_b32 s%d, v1' % sW)
    e('v_and_b32 v3, 15, v2')
    e('v_lshrrev_b32 v4, 4, v2')
    e('v_lshrrev_b32 v5, 2, v3')
    e('v_and_b32 v6, 3, v2')
    e('v_lshlrev_b32 v7, 4, v2')
    e('s_and_b32 s%d, s%d, 1' % (sPAR, sW))
    e('s_and_b32 s37, s2, 7')
    e('s_lshr_b32 s38, s2, 3')
    e('s_lshr_b32 s%d, s37, 2' % sP)
    if P.opt.get('map', 'local') == 'local':
        e('s_and_b32 s39, s37, 3')
        e('s_lshl_b32 s39, s39, 1')
        e('s_lshr_b32 s40, s38, 4')
        e('s_add_u32 s%d, s39, s40' % sB)
        e('s_and_b32 s%d, s38, 15' % sHP)
    else:
        e('s_and_b32 s39, s37, 2')
        e('s_lshl_b32 s39, s39, 1')
        e('s_and_b32 s40, s38, 3')
        e('s_add_u32 s%d, s39, s40' % sB)
        e('s_and_b32 s39, s37, 1')
        e('s_lshl_b32 s39, s39, 3')
        e('s_lshr_b32 s40, s38, 2')
        e('s_add_u32 s%d, s39, s40' % sHP)
    e('s_lshl_b32 s%d, s%d, 12' % (sM4, sW))
    vXD, vWD = 40, 45
    e('v_lshrrev_b32 v11, 3, v2')
    e('v_and_b32 v12, 7, v2')
    e('v_lshrrev_b32 v13, 1, v11')
    e('s_movk_i32 s37, 1280')
    e('v_mul_lo_u32 v11, v11, s37')
    e('s_mul_i32 s37, s%d, %d' % (sW, 72 * 1280))
    for i in range(4):
        e('s_add_u32 s38, s%d, %d' % (sPAR, i))
        e('s_and_b32 s38, s38, 1')
        e('s_lshl_b32 s38, s38, 2')
        e('v_or_b32 v14, s38, v13')
        e('v_xor_b32 v14, v14, v12')
        e('v_lshlrev_b32 v14, 4, v14')
        e('v_add_u32 v14, v14, v11')
        e('s_add_u32 s38, s37, %d' % (i * (8 * 1280 - 1024)))
        e('v_add_u32 v%d, s38, v14' % (vXD + i))
    e('s_mul_i32 s%d, s%d, 9216' % (sM5, sW))
    e('s_add_u32 s%d, s%d, %d' % (sM5, sM5, XB))
    e('v_lshrrev_b32 v12, 5, v2')
    e('v_and_b32 v13, 31, v2')
    e('s_lshl_b32 s37, s%d, 2' % sPAR)
    e('v_or_b32 v14, s37, v12')
    e('v_lshlrev_b32 v12, 13, v12')
    e('s_lshl_b32 s37, s%d, 16' % sW)
    e('v_add_u32 v12, s37, v12')
    for i in range(4):
        e('v_or_b32 v15, %d, v14' % (2 * (i & 1)))
        e('v_lshlrev_b32 v15, 1, v15')
        e('v_xor_b32 v15, v15, v13')
        e('v_lshlrev_b32 v15, 4, v15')
        e('v_add_u32 v15, v15, v12')
        e('v_add_u32 v%d, %d, v15' % (vWD + i, i * (16384 - 1024)))
    e('s_waitcnt lgkmcnt(0)')
    e('s_cmp_eq_u32 s%d, 0' % sP)
    e('s_cselect_b64 s[90:91], s[64:65], s[74:75]')
    e('s_cselect_b64 s[96:97], s[70:71], s[80:81]')
    e('s_cselect_b64 s[92:93], s[66:67], s[76:77]')
    e('s_cselect_b64 s[94:95], s[68:69], s[78:79]')
    e('s_mul_i32 s37, s%d, 368640' % sB)
    e('s_add_u32 s%d, s90, s37' % S_X)
    e('s_addc_u32 s%d, s91, 0' % (S_X + 1))
    e('s_mov_b32 s%d, 368640' % (S_X + 2))
    e('s_mov_b32 s%d, 0x00020000' % (S_X + 3))
    e('s_mov_b32 s%d, s96' % S_WQ)
    e('s_mov_b32 s%d, s97' % (S_WQ + 1))
    e('s_mov_b32 s%d, 5242880' % (S_WQ + 2))
    e('s_mov_b32 s%d, 0x00020000' % (S_WQ + 3))
    e('s_mov_b32 s%d, 0' % sXO)
    e('s_lshl_b32 s%d, s%d, 9' % (sWO_, sHP))
    xpol = P.opt.get('xpol', 'nt'); wpol = P.opt.get('wpol', 'nt')
    def wdma(slot, tag):
        G = []
        for i in range(4):
            g = []
            if i == 0: g.append('s_add_u32 m0, s%d, %d' % (sM4, slot * WSLOT))
            g.append(('buffer_load_dwordx4 v%d, %s, s%d offen offset:%d %s lds' % (vWD + i, srd(S_WQ), sWO_, i * 1024, wpol), tag))
            G.append(g)
        G[-1].append('s_add_u32 s%d, s%d, %d' % (sWO_, sWO_, 32 * 8192))
        return G
    def xdma(slot, tag):
        G = []
        for i in range(9):
            g = []
            if i % 4 == 0:
                g.append('s_add_u32 m0, s%d, %d' % (sM5, slot * XSLOT + i * 1024))
                if i: g.append('s_add_u32 s%d, s%d, %d' % (sT0, sXO, i * 8 * 1280))
            g.append(('buffer_load_dwordx4 v%d, %s, s%d offen offset:%d %s lds' % (vXD + i % 4, srd(S_X), sT0 if i >= 4 else sXO, (i % 4) * 1024, xpol), tag))
            G.append(g)
        G[-1].append('s_add_u32 s%d, s%d, 128' % (sXO, sXO))
        return G
    emit_groups(wdma(0, 'q0'))
    emit_groups(xdma(0, 'q0'))
    e('s_lshr_b32 s37, s2, 7')
    e('s_cmp_eq_u32 s37, 0')
    e('s_cselect_b64 s[98:99], s[72:73], s[82:83]')
    e('s_and_b32 s38, s2, 127')
    e('s_mul_i32 s39, s38, 40960')
    e('s_add_u32 s%d, s98, s39' % S_WO)
    e('s_addc_u32 s%d, s99, 0' % (S_WO + 1))
    e('s_mov_b32 s%d, 40960' % (S_WO + 2))
    e('s_mov_b32 s%d, 0x00020000' % (S_WO + 3))
    e('s_lshl_b32 s39, s37, 3')
    e('s_lshl_b32 s40, s%d, 1' % sW)
    e('s_add_u32 s39, s39, s40')
    e('s_lshl_b32 s39, s39, 7')
    e('s_add_u32 s39, s39, s38')
    e('s_mul_i32 s%d, s39, 5120' % sWFO)
    e('s_add_u32 s%d, s%d, %d' % (sWFO, sWFO, WF_OFF))
    WOS = 139264
    def wodma(half, tag):
        G = [['s_mul_i32 s%d, s%d, 5120' % (sT2, sW), 's_add_u32 m0, s%d, %d' % (sT2, WOS), 's_add_u32 s%d, s%d, %d' % (sT3, sT2, half * 20480)]]
        for i in range(4):
            G.append([('buffer_load_dwordx4 v7, %s, s%d offen offset:%d nt lds' % (srd(S_WO), sT3, i * 1024), tag)])
        G.append(['s_add_u32 m0, s%d, %d' % (sT2, WOS + 4096), 's_add_u32 s%d, s%d, 4096' % (sT3, sT3),
                  ('buffer_load_dwordx4 v7, %s, s%d offen nt lds' % (srd(S_WO), sT3), tag)])
        return G
    emit_groups(wodma(0, 'q1'))
    emit_groups(wdma(1, 'q1'))
    emit_groups(xdma(1, 'q2'))
    emit_groups(wdma(2, 'q2'))
    emit_groups(wdma(3, 'q3'))
    e('s_lshl_b32 s37, s%d, 5' % sB)
    e('s_lshl_b32 s38, s%d, 1' % sHP)
    e('s_add_u32 s37, s37, s38')
    e('s_lshl_b32 s37, s37, 18')
    for (S, src) in ((S_K, 92), (S_V, 94)):
        e('s_add_u32 s%d, s%d, s37' % (S, src))
        e('s_addc_u32 s%d, s%d, 0' % (S + 1, src + 1))
        e('s_mov_b32 s%d, 524288' % (S + 2))
        e('s_mov_b32 s%d, 0x00020000' % (S + 3))
    e('s_mov_b32 s%d, s88' % S_WS)
    e('s_mov_b32 s%d, s89' % (S_WS + 1))
    e('s_mov_b32 s%d, %d' % (S_WS + 2, WF_OFF + 10485760))
    e('s_mov_b32 s%d, 0x00020000' % (S_WS + 3))
    e('s_mov_b32 s%d, 0x%08x' % (sC, f32bits(CSCALE)))
    e('s_mov_b32 s%d, 0x%08x' % (sBIG, f32bits(2.0 ** 40)))
    e('v_lshlrev_b32 v12, 2, v4')
    e('v_add_u32 v12, v12, v5')
    e('s_movk_i32 s37, 1280')
    e('v_mul_lo_u32 v12, v12, s37')
    e('s_mul_i32 s37, s%d, 320' % sW)
    e('s_add_u32 s37, s37, %d' % WOS)
    e('v_add_u32 v12, s37, v12')
    e('v_lshlrev_b32 v13, 4, v6')
    e('v_add_u32 v8, v12, v13')
    e('v_lshlrev_b32 v14, 3, v6')
    e('v_add_u32 v9, v12, v14')
    WFR = 152
    def wo_reads(half):
        L = []
        for g2 in range(2):
            for t in range(5):
                r = WFR + 4 * (g2 * 5 + t) + 2 * half
                if t < 4: a = 'v8'; off = g2 * 160 + (t // 2) * 64 + (t % 2) * 8
                else: a = 'v9'; off = g2 * 160 + 128
                L.append('ds_read_b64_tr_b16 %s, %s offset:%d' % (ar(r, 2), a, off))
        return L
    def wo_stores():
        L = []
        for g2 in range(2):
            L.append('s_add_u32 s%d, s%d, %d' % (sT2, sWFO, g2 * 128 * 5120))
            L.append('s_add_u32 s%d, s%d, 4096' % (sT3, sT2))
            for t in range(5):
                r = WFR + 4 * (g2 * 5 + t)
                if t < 4: L.append(('buffer_store_dwordx4 %s, v7, %s, s%d offen offset:%d' % (ar(r), srd(S_WS), sT2, t * 1024) + ' ' + spol, 'wfst'))
                else: L.append(('buffer_store_dwordx4 %s, v7, %s, s%d offen' % (ar(r), srd(S_WS), sT3) + ' ' + spol, 'wfst'))
        return L
    if getattr(P, 'prof', False):
        e('s_mov_b32 s61, s88'); e('s_mov_b32 s55, s89')
        e('s_memrealtime s[96:97]'); e('s_waitcnt lgkmcnt(0)')
        e('s_mov_b32 s100, 0'); e('s_mov_b32 s101, 0')
    P.stamp(0)
    vXA, vXS = 16, 10
    vWX, vWY = 18, 26
    e('v_lshrrev_b32 v12, 1, v3')
    e('v_lshlrev_b32 v13, 7, v3')
    e('s_lshl_b32 s37, s%d, 13' % sW)
    e('s_add_u32 s37, s37, %d' % XB)
    e('s_lshr_b32 s38, s%d, 1' % sW)
    e('s_lshl_b32 s38, s38, 11')
    e('s_add_u32 s38, s38, %d' % (XB + 256 * 128))
    for ks in range(2):
        e('v_add_u32 v14, %d, v4' % (4 * ks))
        e('v_xor_b32 v14, v14, v12')
        e('v_lshlrev_b32 v14, 4, v14')
        e('v_add_u32 v14, v14, v13')
        e('v_add_u32 v%d, s37, v14' % (vXA + ks))
        e('v_add_u32 v%d, s38, v14' % (vXS + ks))
    e('v_and_b32 v12, 1, v4')
    e('v_lshlrev_b32 v12, 2, v12')
    e('v_or_b32 v12, v12, v5')
    e('v_lshlrev_b32 v13, 3, v4')
    e('v_add_u32 v13, v13, v5')
    e('v_lshlrev_b32 v13, 9, v13')
    e('s_lshl_b32 s38, s%d, 8' % sPAR)
    e('s_xor_b32 s39, s38, 256')
    e('v_lshlrev_b32 v12, 1, v12')
    for ds in range(4):
        e('v_add_u32 v14, %d, v6' % (4 * ds))
        e('v_xor_b32 v14, v14, v12')
        e('v_lshlrev_b32 v14, 4, v14')
        e('v_add_u32 v14, v14, v13')
        e('v_add_u32 v%d, s38, v14' % (vWX + ds))
        e('v_add_u32 v%d, s39, v14' % (vWY + ds))
    e('v_lshlrev_b32 v12, 8, v4')
    e('v_add_u32 v12, s%d, v12' % sM4)
    for i in range(4):
        e('v_add_u32 v13, %d, v4' % (4 * i))
        e('v_xor_b32 v13, v13, v3')
        e('v_lshlrev_b32 v13, 4, v13')
        e('v_add_u32 v%d, v13, v12' % (vKD + i))
    for i in range(2):
        e('v_add_u32 v13, %d, v4' % (4 * i))
        e('v_lshlrev_b32 v13, 1, v13')
        e('v_xor_b32 v13, v13, v3')
        e('v_lshlrev_b32 v13, 4, v13')
        e('v_add_u32 v%d, v13, v12' % (vVD + i))
    e('s_mov_b32 s%d, 0' % sKO)
    e('s_mov_b32 s%d, 0' % sVO)
    e('v_lshlrev_b32 v49, 6, v2')
    e('v_add_u32 v49, s%d, v49' % sM4)
    e('s_mov_b32 s53, %d' % (int(P.opt.get('pf0', 2)) * 16384))

    tiles = [('X', t0, q) for t0 in range(8) for q in range(5)] + [('Y', t0, q) for t0 in range(8) for q in range(4)]
    accmap = {}
    nv = 0; na = 0
    for tl in [t for t in tiles if t[0] == 'Y'] + [t for t in tiles if t[0] == 'X']:
        if nv < 48:
            accmap[tl] = ('v', 64 + 4 * nv); nv += 1
        else:
            accmap[tl] = ('a', 4 * na); na += 1
    def acc(g, t0, q):
        k, b = accmap[(g, t0, q)]; return '%s[%d:%d]' % (k, b, b + 3)
    ARING = 96
    BF = 112
    def bfrag(par, q): return ar(BF + 20 * par + 4 * q)
    def aslot(i): return ar(ARING + 4 * (i % 4))
    def a_loads(c, i):
        va = (vWX + i // 2) if i < 8 else (vWY + (i - 8) // 2)
        r = ARING + 4 * (i % 4); o = (c % 4) * WSLOT + 8 * (i % 2)
        return ['ds_read_b64_tr_b16 %s, v%d offset:%d' % (ar(r, 2), va, o), 'ds_read_b64_tr_b16 %s, v%d offset:%d' % (ar(r + 2, 2), va, o + 2048)]
    def b_loads(c):
        par = c % 2; o = ((c // 2) % 2) * XSLOT
        L = ['ds_read_b128 %s, v%d offset:%d' % (bfrag(par, q), vXA + par, o + q * 2048) for q in range(4)]
        L.append('ds_read_b128 %s, v%d offset:%d' % (bfrag(par, 4), vXS + par, o))
        return L
    import k1b
    k1b.early_setup(P)
    P.waitvm(['q0'])
    e('s_barrier')
    for x in b_loads(0): e(x)
    for i in range(4):
        for x in a_loads(0, i): e(x)
    P.stamp(1)

    seq = [(i, q) for i in range(16) for q in range(5 if i < 8 else 4)]
    NQ = len(seq)
    first = {}; lastuse = {}
    for g, (i, q) in enumerate(seq):
        first.setdefault(i, g); lastuse[i] = g
    GBQ = 58
    def emit_qchunk(c, dma_groups, need_tag, last=False, post=None):
        par = c % 2
        cap = [2] * NQ
        fill = [[] for _ in range(NQ)]
        for i in range(0, 16, 2):
            if first[i] > 0: cap[first[i] - 1] -= 1
        def place(g, items):
            for x in items:
                while cap[g] <= 0: g += 1
                fill[g].append(x); cap[g] -= 1
            return g
        for i in range(4, 16):
            place(lastuse[i - 4], a_loads(c, i))
        assert lastuse[11] < GBQ
        cap[GBQ] -= 2; fill[GBQ].append(('BAR',))
        if not last:
            g = place(GBQ + 1, b_loads(c + 1))
            for i in range(4):
                place(max(lastuse[12 + i], GBQ + 1), a_loads(c + 1, i))
        if post: place(GBQ + 1, post)
        g = 1
        for grp in dma_groups:
            for x in grp:
                while cap[min(g, NQ - 1)] <= 0 and g < NQ - 1: g += 1
                g = min(g, NQ - 1)
                fill[g].append(x); cap[g] -= 1
            g += int(P.opt.get('qsp', 3))
        for g, (i, q) in enumerate(seq):
            grp = 'X' if i < 8 else 'Y'
            a = acc(grp, i % 8, q)
            x = aslot(i + 1) if (i % 2 == 0 and g == first[i]) else None
            e('v_mfma_f32_16x16x32_bf16 %s, %s, %s, %s' % (a, aslot(i), bfrag(par, q), a if c != 0 else '0'), xrd=x)
            for x in fill[g]:
                if isinstance(x, tuple) and x[0] == 'BAR':
                    P.acc_begin()
                    P.waitvm([need_tag] if isinstance(need_tag, str) else need_tag)
                    e('s_waitcnt lgkmcnt(0)')
                    e('s_barrier')
                    P.acc_end(0)
                elif isinstance(x, tuple): e(x[0], tag=x[1])
                else: e(x)
    P.abl = P.opt.get('qabl', '').split(',')
    P.block('k1_q0')
    emit_qchunk(0, [], 'q1', post=wo_reads(0))
    e('s_mov_b32 s%d, 4' % sCNT)
    if P.opt.get('qst'): P.stamp(8)
    P.block('k1_qloop')
    e('K1_QLOOP:')
    for cc in range(1, 5):
        G = wdma((cc + 3) % 4, 'q%d' % ((cc + 3) % 4))
        if cc % 2 == 0:
            GX = xdma((cc // 2 + 1) % 2, 'q%d' % ((cc + 2) % 4))
            G = GX + G
        pf = int(P.opt.get('pf', 0))
        tl = []
        for k in range(pf):
            tl.append([('buffer_load_dword v50, v49, %s, s53 offen %s' % (srd(S_K), P.opt.get('pfpol', 'nt')), 'pf')])
            tl.append([('buffer_load_dword v51, v49, %s, s53 offen %s' % (srd(S_V), P.opt.get('pfpol', 'nt')), 'pf'), 's_add_u32 s53, s53, 16384'])
        for k, g in enumerate(tl):
            if k * 4 // len(tl) == cc - 1: G = G + [g]
        emit_qchunk(cc, G, 'q%d' % ((cc + 1) % 4))
    e('s_sub_u32 s%d, s%d, 1' % (sCNT, sCNT))
    e('s_cmp_lg_u32 s%d, 0' % sCNT)
    e('s_cbranch_scc1 K1_QLOOP')
    P.abl = ()
    P.block('k1_qtail')
    if P.opt.get('qst'): P.stamp(9)
    emit_qchunk(17, wodma(1, 'q3') + kdma(0, 'p0'), 'q2')
    emit_qchunk(18, vdma(0, 'p0') + kdma(1, 'p1') + vdma(1, 'p1'), 'q3')
    emit_qchunk(19, kdma(2, 'p2') if int(P.opt.get('kahead', 3)) == 3 else [], 'none', last=True, post=None)
    if P.opt.get('qst'): P.stamp(10)
    W1 = wo_reads(1)
    for x in W1: e(x)
    for x in wo_stores():
        if isinstance(x, tuple): e(x[0], tag=x[1])
        else: e(x)
    e('s_mov_b32 s%d, s86' % S_WO)
    e('s_mov_b32 s%d, s87' % (S_WO + 1))
    e('s_mov_b32 s%d, 256' % (S_WO + 2))
    if P.opt.get('fused', '1') == '1':
        e('s_cmp_lg_u32 s%d, 0' % sW)
        e('s_cbranch_scc1 K1_NOX')
        e('s_getreg_b32 s%d, hwreg(HW_REG_XCC_ID)' % sT0)
        e('s_and_b32 s%d, s%d, 15' % (sT0, sT0))
        e('s_lshl_b32 s%d, 1, s%d' % (sT0, sT0))
        e('s_lshl_b32 s%d, s%d, 3' % (sT1, sP))
        e('s_add_u32 s%d, s%d, s%d' % (sT1, sT1, sB))
        e('s_lshl_b32 s%d, s%d, 3' % (sT1, sT1))
        e('s_add_u32 s%d, s%d, 128' % (sT1, sT1))
        e('v_mov_b32 v60, s%d' % sT1)
        e('v_mov_b32 v61, s%d' % sT0)
        e('v_mov_b32 v62, 1')
        e('v_cmp_eq_u32 vcc, 0, v2')
        e('s_and_saveexec_b64 s[62:63], vcc')
        e('buffer_atomic_or v61, v60, %s, 0 offen sc1' % srd(S_WO))
        e('buffer_atomic_add v62, v60, %s, 0 offen offset:4 sc1' % srd(S_WO))
        e('s_mov_b64 exec, s[62:63]')
        e('K1_NOX:')
    P.stamp(2)
    return dict(accmap=accmap)
```

```python
from asmlib import *
from k1 import *
from k1b import *

def gen_emit(P, info, T):
    e = P.e
    fused = P.opt.get('fused', '1') == '1'
    spol = ' sc1' if fused else (' ' + P.opt.get('ostp', ''))
    slots, GB = T['slots'], T['GB']
    def valid(blk): return 0 <= blk[1] <= 15
    def emit_item_groups(g):
        for x in g:
            if isinstance(x, tuple): e(x[0], tag=x[1])
            else: e(x)
    def emit_range(G0, G1, zero_first=False, rawS0=False, skipv=None, skip_dma=False, skip_bar=False):
        for GG in range(G0, G1):
            s = slots[GG]; m = s['m']
            if valid(m['blk']):
                C = m['C']
                if zero_first and m['blk'] == ('F', 0) and m['ph'] == 4: C = '0'
                if rawS0 and m['ph'] == 1 and m['blk'] == ('F', 0) and m.get('ds') == 0: C = '0'
                e('v_mfma_f32_16x16x32_bf16 %s, %s, %s, %s' % (m['D'], m['A'], m['B'], C))
            for (t, blk) in s['l']:
                if valid(blk): e(t)
            for it in s['s']:
                if it[0] == 'BAR':
                    if skip_bar: continue
                    P.acc_begin()
                    P.waitvm(['p%d' % (it[1] % 4)])
                    e('s_barrier')
                    P.acc_end(1)
                    if P.opt.get('ist'):
                        e('s_memtime s[90:91]'); e('s_waitcnt lgkmcnt(0)')
                        e('s_mov_b32 s91, m0'); e('s_mov_b32 m0, s101'); e('v_writelane_b32 v1, s90, m0'); e('s_mov_b32 m0, s91'); e('s_add_u32 s101, s101, 1')
                elif it[0] == 'DMA':
                    if not skip_dma: emit_item_groups(it[1])
            for (t, blk) in s['v']:
                if valid(blk) and not (skipv and skipv(GG, t, blk)): e(t)
    P.cur = P.blocks['k1_asetup']
    c0 = []
    for GG in range(-NG + GB, GB):
        for it in slots[GG]['s']:
            if it[0] == 'DMA' and it[2] == 0: c0.append((GG, it[1]))
    assert len(c0) == 8, c0
    def emit_c0_early():
        for GG, g in c0:
            if GG < 0: emit_item_groups(g)
    emit_c0_early()

    P.stamp(3)
    P.block('k1_A')
    e('K1_A:')
    for GG in range(-NG + GB, 0):
        for (t, blk) in slots[GG]['l']:
            if blk == ('F', 0): e(t)
    deferred = []
    def skipv(GG, t, blk):
        if blk == ('F', 0) and GG < 40:
            deferred.append(t); return True
        return False
    emit_range(0, 40, rawS0=True, skipv=skipv)
    e('s_cmp_eq_u32 s%d, 1' % sGIVEN)
    e('s_cbranch_scc1 K1_AGIVEN')
    P.block('k1_Amax')
    R = range(5)
    def S(qt, i): return vSF + 8 * qt + i
    def N(qt, i): return vNM + 4 * qt + i
    for qt in R: e('v_max3_f32 v%d, v%d, v%d, v%d' % (N(qt, 0), S(qt, 0), S(qt, 1), S(qt, 2)))
    for qt in R: e('v_max3_f32 v%d, v%d, v%d, v%d' % (N(qt, 1), S(qt, 3), S(qt, 4), S(qt, 5)))
    for qt in R: e('v_max3_f32 v%d, v%d, v%d, v%d' % (N(qt, 0), N(qt, 0), S(qt, 6), S(qt, 7)))
    for qt in R: e('v_max_f32 v%d, v%d, v%d' % (N(qt, 0), N(qt, 0), N(qt, 1)))
    def xreduce_max():
        for sw in ('v_permlane32_swap_b32', 'v_permlane16_swap_b32'):
            for qt in R: e('v_mov_b32 v%d, v%d' % (N(qt, 1), N(qt, 0)))
            for qt in R: e('%s v%d, v%d' % (sw, N(qt, 0), N(qt, 1)))
            for qt in R: e('v_max_f32 v%d, v%d, v%d' % (N(qt, 0), N(qt, 0), N(qt, 1)))
        for qt in R: e('v_sub_f32 v%d, 0, v%d' % (N(qt, 0), N(qt, 0)))
        for i in range(1, 4):
            for qt in R: e('v_mov_b32 v%d, v%d' % (N(qt, i), N(qt, 0)))
    xreduce_max()
    P.block('k1_A2')
    e('K1_AGIVEN:')
    for i in range(8):
        for qt in R: e('v_add_f32 v%d, v%d, v%d' % (S(qt, i), N(qt, 0), S(qt, i)))
    for t in deferred: e(t)
    emit_range(40, GB, zero_first=True)
    P.block('k1_B')
    P.stamp(4)
    emit_range(GB, NG + GB, zero_first=True)
    e('s_mov_b32 s%d, 4' % sCNT)
    def text_of(G0, G1):
        save = P.cur; tmp = []; P.cur = tmp
        emit_range(G0, G1); P.cur = save
        return [i.text for i in tmp]
    for p in range(2, 12):
        assert text_of((p - 1) * NG + GB, p * NG + GB) == text_of((p + 3) * NG + GB, (p + 4) * NG + GB), p
    P.abl = P.opt.get('aabl', '').split(',')
    P.block('k1_L1')
    e('K1_L1:')
    emit_range(1 * NG + GB, 3 * NG + GB)
    e('s_sub_u32 s%d, s%d, 1' % (sCNT, sCNT))
    e('s_cmp_eq_u32 s%d, 0' % sCNT)
    e('s_cbranch_scc1 K1_T')
    P.block('k1_L2')
    emit_range(3 * NG + GB, 5 * NG + GB)
    e('s_branch K1_L1')
    P.abl = ()
    P.block('k1_T')
    e('K1_T:')
    P.stamp(5)
    emit_range(15 * NG + GB, 16 * NG)
    emit_range(16 * NG, 16 * NG + 76, skip_dma=True)
    assert all(GG < GB for GG, _ in c0)

    PK = vSF
    P.block('k1_E')
    P.stamp(6)
    e('s_mov_b64 s[62:63], 0')
    for qt in R:
        e('v_cmp_nlt_f32 vcc, v%d, v%d' % (vL + 4 * qt, 60)) if False else None
    e('v_mov_b32 v60, s%d' % sBIG)
    for qt in R:
        e('v_cmp_nlt_f32 vcc, v%d, v60' % (vL + 4 * qt))
        e('s_or_b64 s[62:63], s[62:63], vcc')
    e('s_cmp_lg_u64 s[62:63], 0')
    e('s_cselect_b32 s%d, 1, 0' % sT0)
    e('v_mov_b32 v61, s%d' % sT0)
    e('s_lshl_b32 s%d, s%d, 2' % (sT1, sW))
    e('s_add_u32 s%d, s%d, %d' % (sT1, sT1, XA + 16384))
    e('v_mov_b32 v62, s%d' % sT1)
    e('ds_write_b32 v62, v61')
    e('v_mov_b32 v60, v%d' % (vNM + 16))
    e('v_mov_b32 v61, v%d' % (vL + 16))
    e('s_lshl_b32 s%d, s%d, 9' % (sT1, sW))
    e('s_add_u32 s%d, s%d, %d' % (sT1, sT1, XA + 16384 + 256))
    e('v_lshlrev_b32 v62, 3, v2')
    e('v_add_u32 v62, s%d, v62' % sT1)
    e('ds_write_b64 v62, v[60:61]')
    e('s_xor_b32 s%d, s%d, 512' % (sT1, sT1))
    e('v_lshlrev_b32 v63, 3, v2')
    e('v_add_u32 v63, s%d, v63' % sT1)
    e('s_lshl_b32 s%d, s%d, 12' % (sT1, sW))
    e('s_add_u32 s%d, s%d, %d' % (sT1, sT1, XA))
    e('v_add_u32 v32, s%d, v7' % sT1)
    e('s_xor_b32 s%d, s%d, 4096' % (sT1, sT1))
    e('v_add_u32 v33, s%d, v7' % sT1)
    if fused:
        e('s_lshl_b32 s%d, s%d, 3' % (sT1, sP))
        e('s_add_u32 s%d, s%d, s%d' % (sT1, sT1, sB))
        e('s_lshl_b32 s%d, s%d, 3' % (sT1, sT1))
        e('s_add_u32 s%d, s%d, 128' % (sT1, sT1))
        e('s_load_dwordx2 s[92:93], s[28:29], s%d' % sT1)
    e('s_cmp_eq_u32 s%d, 1' % sPAR)
    e('s_cbranch_scc1 K1_E1')
    names = []
    for par in range(2):
        P.block('k1_E%d' % par)
        if par: e('K1_E1:')
        keep = range(4 * par, 4 * par + 4); send = range(4 * (1 - par), 4 * (1 - par) + 4)
        for i, dt in enumerate(send):
            e('ds_write_b128 v32, %s offset:%d' % (O(4, dt), i * 1024))
        for qt in range(4):
            e('v_rcp_f32 v%d, v%d' % (vNM + 4 * qt + 2, vL + 4 * qt))
        tb = 0
        for qt in range(4):
            rr = vNM + 4 * qt + 2
            for u in range(4):
                t = vVR + 8 * (tb % 2); d = PK + 4 * (4 * qt + u); tb += 1
                for i in range(8):
                    e('v_accvgpr_read_b32 v%d, a%d' % (t + i, aO + 32 * qt + 8 * u + i))
                for i in range(0, 8, 2):
                    e('v_pk_mul_f32 v[%d:%d], v[%d:%d], v[%d:%d] op_sel_hi:[1,0]' % (t + i, t + i + 1, t + i, t + i + 1, rr, rr + 1))
                for i in range(4):
                    e('v_cvt_pk_bf16_f32 v%d, v%d, v%d' % (d + i, t + 2 * i, t + 2 * i + 1))
        if fused: P.waitvm(['wfst'])
        e('s_waitcnt lgkmcnt(0)')
        e('s_barrier')
        if fused:
            e('s_lshl_b32 s%d, s%d, 2' % (sT0, sHEAD))
            e('s_add_u32 s%d, s%d, s%d' % (sT0, sT0, sW))
            e('s_add_u32 s%d, s%d, s%d' % (sT0, sT0, sGIVEN))
            e('s_cmp_lg_u32 s%d, 0' % sT0)
            e('s_cbranch_scc1 K1_NOW%d' % par)
            e('s_lshr_b32 s%d, s2, 7' % sT0)
            e('s_lshl_b32 s%d, s%d, 2' % (sT0, sT0))
            e('s_add_u32 s%d, s%d, 64' % (sT0, sT0))
            e('v_mov_b32 v60, s%d' % sT0)
            e('v_mov_b32 v61, 1')
            e('v_cmp_eq_u32 vcc, 0, v2')
            e('s_and_saveexec_b64 s[62:63], vcc')
            e('buffer_atomic_add v61, v60, %s, 0 offen sc1' % srd(S_WO))
            e('s_mov_b64 exec, s[62:63]')
            e('K1_NOW%d:' % par)
        pb = vL
        for i in range(4):
            e('ds_read_b128 %s, v33 offset:%d' % (vr(pb + 4 * i), i * 1024))
        e('ds_read_b64 v[60:61], v63')
        e('v_mov_b32 v62, %d' % (XA + 16384))
        e('ds_read_b128 %s, v62' % vr(vVR))
        e('v_or_b32 v%d, v%d, v%d' % (vVR, vVR, vVR + 1))
        e('v_or_b32 v%d, v%d, v%d' % (vVR + 2, vVR + 2, vVR + 3))
        e('v_or_b32 v%d, v%d, v%d' % (vVR, vVR, vVR + 2))
        e('v_readfirstlane_b32 s%d, v%d' % (sT0, vVR))
        e('s_andn2_b32 s%d, s%d, s%d' % (sT0, sT0, sGIVEN))
        e('s_cmp_lg_u32 s%d, 0' % sT0)
        e('s_cbranch_scc1 K1_FB')
        P.block('k1_F%d' % par)
        nmo = vNM + 16; lo = vL + 16
        e('v_min_f32 v62, v60, v%d' % nmo)
        e('v_sub_f32 v63, v62, v%d' % nmo)
        e('v_sub_f32 v62, v62, v60')
        e('v_exp_f32 v63, v63')
        e('v_exp_f32 v62, v62')
        e('v_mul_f32 v61, v61, v62')
        e('v_fma_f32 v61, v%d, v63, v61' % lo)
        e('v_rcp_f32 v61, v61')
        e('v_mul_f32 v63, v63, v61')
        e('v_mul_f32 v62, v62, v61')
        for uu in range(2):
            t = vVR + 8 * uu; d = PK + 64 + 4 * uu
            for i in range(8):
                e('v_accvgpr_read_b32 v%d, a%d' % (t + i, aO + 128 + 4 * keep[0] + 8 * uu + i))
            for i in range(8):
                e('v_mul_f32 v%d, v63, v%d' % (t + i, t + i))
            for i in range(8):
                e('v_fma_f32 v%d, v%d, v62, v%d' % (t + i, pb + 8 * uu + i, t + i))
            for i in range(4):
                e('v_cvt_pk_bf16_f32 v%d, v%d, v%d' % (d + i, t + 2 * i, t + 2 * i + 1))
        if par == 0: e('s_branch K1_N')
    P.block('k1_N')
    e('K1_N:')
    P.stamp(7)
    e('s_cmp_eq_u32 s%d, 1' % sHEAD)
    e('s_cbranch_scc1 K1_ST')
    P.block('k1_N2')
    e('s_mov_b32 s%d, 1' % sHEAD)
    if getattr(P, 'prof', False) and not P.opt.get('qst'):
        for i in range(4):
            e('s_mov_b64 s[%d:%d], s[%d:%d]' % (64 + 2 * (8 + i), 65 + 2 * (8 + i), 64 + 2 * (4 + i), 65 + 2 * (4 + i)))
    e('s_mov_b32 s%d, 0' % sGIVEN)
    e('s_add_u32 s%d, s%d, %d' % (sOFB, sOFB, 4 * 9216))
    for i in range(80):
        e('v_accvgpr_read_b32 v%d, a%d' % (vQ + i, aQN + i))
    for i in range(72):
        e('v_accvgpr_write_b32 a%d, v%d' % (aQN + i, PK + i))
    e('s_branch K1_A')
    P.block('k1_ST')
    e('K1_ST:')
    e('s_mul_i32 s%d, s%d, %d' % (sT3, sPAR, 2 * 9216))
    e('s_add_u32 s%d, s%d, s%d' % (sT3, sT3, sOT + 4))
    def final_stores(pol):
        for hd in (1, 0):
            if hd == 0: e('s_sub_u32 s%d, s%d, %d' % (sOFB, sOFB, 4 * 9216))
            for qt in range(5):
                e('s_add_u32 s%d, s%d, s%d' % (sT1, (sOT + qt) if qt < 4 else sT3, sOFB))
                for u in range(4 if qt < 4 else 2):
                    k = 4 * qt + u
                    src = vr(PK + 4 * k) if hd == 1 else ar(aQN + 4 * k)
                    if u: e('s_add_u32 s%d, s%d, 9216' % (sT1, sT1))
                    e('buffer_store_dwordx4 %s, v7, %s, s%d offen%s' % (src, srd(S_WS), sT1, pol), tag='ost')
    if fused:
        e('s_bcnt1_i32_b32 s%d, s92' % sT0)
        e('s_cmp_eq_u32 s%d, 1' % sT0)
        e('s_cselect_b32 s%d, 1, 0' % sT0)
        e('s_cmp_eq_u32 s93, 16')
        e('s_cselect_b32 s%d, 1, 0' % sT1)
        e('s_and_b32 s%d, s%d, s%d' % (sT0, sT0, sT1))
        if P.opt.get('forceslow'): e('s_mov_b32 s%d, 0' % sT0)
        e('s_cmp_eq_u32 s%d, 1' % sT0)
        e('s_cbranch_scc0 K1_STS')
        final_stores('')
        e('s_branch K1_FIN')
        P.block('k1_STS')
        e('K1_STS:')
        final_stores(' sc1')
    else:
        final_stores(spol)
    e('s_branch K1_FIN')

    P.block('k1_FB')
    e('K1_FB:')
    e('s_waitcnt vmcnt(0) lgkmcnt(0)')
    e('s_barrier')
    e('v_lshlrev_b32 v60, 8, v3')
    e('v_lshlrev_b32 v61, 4, v4')
    e('v_add_u32 v60, v60, v61')
    e('s_lshl_b32 s%d, s%d, 18' % (sT0, sHEAD))
    e('s_mov_b32 s%d, 64' % sCNT)
    for qt in R: e('v_mov_b32 v%d, 0xff800000' % N(qt, 0))
    P.block('k1_FBL')
    e('K1_FBL:')
    for ds in range(4):
        e('buffer_load_dwordx4 %s, v60, %s, s%d offen offset:%d' % (vr(vVR + 4 * ds), srd(S_K), sT0, ds * 64))
    for ds in range(4):
        for qt in R:
            D = vr(vSF + 8 * qt)
            e('v_mfma_f32_16x16x32_bf16 %s, %s, %s, %s' % (D, vr(vVR + 4 * ds), Qf(qt, ds), D if ds else '0'))
    for qt in R:
        e('v_max3_f32 v%d, v%d, v%d, v%d' % (N(qt, 0), N(qt, 0), S(qt, 0), S(qt, 1)))
    for qt in R:
        e('v_max3_f32 v%d, v%d, v%d, v%d' % (N(qt, 0), N(qt, 0), S(qt, 2), S(qt, 3)))
    e('s_add_u32 s%d, s%d, 4096' % (sT0, sT0))
    e('s_sub_u32 s%d, s%d, 1' % (sCNT, sCNT))
    e('s_cmp_lg_u32 s%d, 0' % sCNT)
    e('s_cbranch_scc1 K1_FBL')
    P.block('k1_FB2')
    xreduce_max()
    e('s_mov_b32 s%d, 1' % sGIVEN)
    e('s_lshl_b32 s%d, s%d, 18' % (sKO, sHEAD))
    e('s_lshl_b32 s%d, s%d, 18' % (sVO, sHEAD))
    for G in (kdma(0, 'p0'), vdma(0, 'p0'), kdma(1, 'p1'), vdma(1, 'p1')) + ((kdma(2, 'p2'),) if int(P.opt.get('kahead', 3)) == 3 else ()):
        for g in G: emit_item_groups(g)
    emit_c0_early()
    P.waitvm(['p0'])
    e('s_barrier')
    e('s_branch K1_A')
    P.block('k1_end')
    e('K1_FIN:')
    if fused:
        e('s_waitcnt vmcnt(0)')
        e('s_barrier')
        e('s_cmp_lg_u32 s%d, 0' % sW)
        e('s_cbranch_scc1 K1_NOC')
        e('s_lshl_b32 s%d, s%d, 3' % (sT0, sP))
        e('s_add_u32 s%d, s%d, s%d' % (sT0, sT0, sB))
        e('s_lshl_b32 s%d, s%d, 2' % (sT0, sT0))
        e('v_mov_b32 v60, s%d' % sT0)
        e('v_mov_b32 v61, 1')
        e('v_cmp_eq_u32 vcc, 0, v2')
        e('s_and_saveexec_b64 s[62:63], vcc')
        e('buffer_atomic_add v61, v60, %s, 0 offen sc1' % srd(S_WO))
        e('s_mov_b64 exec, s[62:63]')
        e('K1_NOC:')
    if getattr(P, 'prof', False):
        e('s_memrealtime s[98:99]')
        e('s_waitcnt lgkmcnt(0)')
        for i in range(16):
            src = (64 + 2 * i) if i < 12 else {12: 96, 13: 98, 14: 100, 15: 101}[i]
            e('v_mov_b32 v%d, s%d' % (64 + i, src))
        e('s_lshl_b32 s37, s2, 2')
        e('s_add_u32 s37, s37, s%d' % sW)
        if P.opt.get('ist'):
            e('s_lshl_b32 s38, s37, 8')
            e('v_lshlrev_b32 v61, 2, v2')
            e('v_add_u32 v61, s38, v61')
            e('s_add_u32 s8, s61, 0x4200000')
            e('s_addc_u32 s9, s55, 0')
            e('s_mov_b32 s10, 0x100000')
            e('s_mov_b32 s11, 0x00020000')
            e('buffer_store_dword v1, v61, s[8:11], 0 offen')
        e('s_lshl_b32 s37, s37, 6')
        e('v_mov_b32 v60, s37')
        e('s_add_u32 s8, s61, 0x4000000')
        e('s_addc_u32 s9, s55, 0')
        e('s_mov_b32 s10, 0x100000')
        e('s_mov_b32 s11, 0x00020000')
        e('v_cmp_eq_u32 vcc, 0, v2')
        e('s_and_saveexec_b64 s[62:63], vcc')
        e('s_cbranch_execz %s' % ('K1_PRE2' if fused else 'K1_DONE'))
        for i in range(4):
            e('buffer_store_dwordx4 v[%d:%d], v60, s[8:11], 0 offen offset:%d' % (64 + 4 * i, 67 + 4 * i, 16 * i))
    if fused:
        e('K1_PRE2:')
        e('s_mov_b64 exec, -1')
        e('s_branch K2_START')
    e('K1_DONE:')
    e('s_endpgm')

    pre = ['k1_pre', 'k1_q0', 'k1_qloop', 'k1_qloop', 'k1_qtail', 'k1_fx']
    paths = []
    for par in range(2):
        head = ['k1_A', 'k1_Amax', 'k1_A2', 'k1_B', 'k1_L1', 'k1_L2', 'k1_L1', 'k1_L2', 'k1_L1', 'k1_T', 'k1_E', 'k1_E%d' % par]
        paths.append(pre + ['k1_fx%d' % par, 'k1_asetup'] + head + ['k1_F%d' % par, 'k1_N', 'k1_N2'] + head + ['k1_F%d' % par, 'k1_N', 'k1_ST'] + (['k1_STS'] if fused else []))
        paths.append(pre + ['k1_fx%d' % par, 'k1_asetup'] + head + ['k1_FB', 'k1_FBL', 'k1_FBL', 'k1_FB2', 'k1_A', 'k1_A2', 'k1_B', 'k1_L1', 'k1_T'])
    return paths
```

```python
from asmlib import *

WF_OFF = 0x2400000

def gen_k2(P, name='oproj_kernel', fused=False):
    P.block('k2_pre')
    e = P.e
    pol = 'sc1' if fused else ''
    if not fused:
        e('.p2align 8')
        e('.globl %s' % name)
        e('.type %s,@function' % name)
        e('%s:' % name)
        e('s_cmp_ge_u32 s2, 256')
        e('s_cbranch_scc1 K2_DONE')
    e('K2_START:')
    e('s_load_dwordx2 s[36:37], s[0:1], 88')
    e('s_load_dwordx2 s[4:5], s[0:1], 96')
    e('s_load_dwordx2 s[6:7], s[0:1], 80')
    e('v_lshrrev_b32 v1, 6, v0')
    e('v_and_b32 v2, 63, v0')
    e('v_readfirstlane_b32 s20, v1')
    e('v_lshlrev_b32 v3, 4, v2')
    e('s_and_b32 s21, s2, 7')
    e('s_lshr_b32 s22, s2, 3')
    e('s_lshr_b32 s23, s21, 2')
    if P.opt.get('map', 'local') == 'local':
        e('s_and_b32 s24, s21, 3')
        e('s_lshl_b32 s24, s24, 1')
        e('s_lshr_b32 s25, s22, 4')
        e('s_add_u32 s24, s24, s25')
        e('s_lshl_b32 s38, s23, 3')
        e('s_add_u32 s38, s38, s24')
        e('s_lshl_b32 s24, s24, 1')
        e('s_lshr_b32 s25, s22, 3')
        e('s_and_b32 s25, s25, 1')
        e('s_add_u32 s24, s24, s25')
        e('s_and_b32 s25, s22, 7')
    else:
        e('s_and_b32 s24, s21, 2')
        e('s_lshl_b32 s24, s24, 1')
        e('s_and_b32 s25, s22, 3')
        e('s_add_u32 s24, s24, s25')
        e('s_lshl_b32 s38, s23, 3')
        e('s_add_u32 s38, s38, s24')
        e('s_lshl_b32 s24, s24, 1')
        e('s_and_b32 s25, s21, 1')
        e('s_add_u32 s24, s24, s25')
        e('s_lshr_b32 s25, s22, 2')
    e('s_waitcnt lgkmcnt(0)')
    e('s_lshl_b32 s26, s23, 4')
    e('s_add_u32 s26, s26, s24')
    e('s_mul_i32 s26, s26, %d' % (128 * 9216))
    e('s_add_u32 s8, s4, s26')
    e('s_addc_u32 s9, s5, 0')
    e('s_mov_b32 s10, %d' % (128 * 9216))
    e('s_mov_b32 s11, 0x00020000')
    e('s_lshl_b32 s26, s23, 3')
    e('s_add_u32 s26, s26, s25')
    e('s_mul_i32 s26, s26, %d' % (128 * 5120))
    e('s_add_u32 s26, s26, %d' % WF_OFF)
    e('s_add_u32 s12, s4, s26')
    e('s_addc_u32 s13, s5, 0')
    e('s_mov_b32 s14, %d' % (128 * 5120))
    e('s_mov_b32 s15, 0x00020000')
    e('s_mov_b32 s16, s6')
    e('s_mov_b32 s17, s7')
    e('s_mov_b32 s18, %d' % (8 * 288 * 1280 * 2))
    e('s_mov_b32 s19, 0x00020000')
    if getattr(P,'prof',False): e('s_memtime s[52:53]'); e('s_memrealtime s[48:49]'); e('s_waitcnt lgkmcnt(0)')
    if fused:
        e('s_mov_b32 s40, s36')
        e('s_mov_b32 s41, s37')
        e('s_mov_b32 s42, 256')
        e('s_mov_b32 s43, 0x00020000')
        e('s_lshl_b32 s38, s38, 2')
        e('s_lshl_b32 s39, s23, 2')
        e('s_add_u32 s39, s39, 64')
        e('v_mov_b32 v10, s38')
        e('v_mov_b32 v11, s39')
        e('s_mov_b32 s39, 0x10000')
        e('s_cmp_lg_u32 s20, 0')
        e('s_cbranch_scc1 K2_GO')
        e('K2_POLL:')
        e('buffer_load_dword v12, v10, s[40:43], 0 offen sc1')
        e('buffer_load_dword v13, v11, s[40:43], 0 offen sc1')
        e('s_waitcnt vmcnt(0)')
        e('v_readfirstlane_b32 s37, v12')
        e('v_readfirstlane_b32 s38, v13')
        e('s_cmp_eq_u32 s37, 16')
        e('s_cselect_b32 s37, 1, 0')
        e('s_cmp_eq_u32 s38, 128')
        e('s_cselect_b32 s38, 1, 0')
        e('s_and_b32 s37, s37, s38')
        e('s_cmp_eq_u32 s37, 1')
        e('s_cbranch_scc1 K2_GO')
        e('s_sub_u32 s39, s39, 1')
        e('s_cmp_eq_u32 s39, 0')
        e('s_cbranch_scc1 K2_GO')
        e('s_sleep %s' % P.opt.get('sleep', '16'))
        e('s_branch K2_POLL')
        e('K2_GO:')
        e('s_barrier')
    e('s_mul_i32 s30, s20, 9216')
    e('s_mul_i32 s31, s20, 5120')
    ACC = 64
    def acc(t, qt):
        r = ACC + 4 * (t * 9 + qt); return 'v[%d:%d]' % (r, r + 3)
    def fA(st, t):
        r = st * 56 + 4 * t; return 'a[%d:%d]' % (r, r + 3)
    def fB(st, qt):
        r = st * 56 + 20 + 4 * qt; return 'a[%d:%d]' % (r, r + 3)
    def loads(st):
        L = []
        L.append(['buffer_load_dwordx4 %s, v3, s[12:15], s31 offen %s' % (fA(st, 0), pol)])
        L.append(['s_add_u32 s32, s30, 4096', 's_add_u32 s33, s30, 8192', 'buffer_load_dwordx4 %s, v3, s[8:11], s30 offen %s' % (fB(st, 0), pol)])
        for qt in range(1, 4):
            L.append(['buffer_load_dwordx4 %s, v3, s[8:11], s30 offen offset:%d %s' % (fB(st, qt), qt * 1024, pol)])
        for qt in range(4, 8):
            L.append(['buffer_load_dwordx4 %s, v3, s[8:11], s32 offen offset:%d %s' % (fB(st, qt), (qt - 4) * 1024, pol)])
        L.append(['buffer_load_dwordx4 %s, v3, s[8:11], s33 offen %s' % (fB(st, 8), pol)])
        for t in range(1, 4):
            L.append(['buffer_load_dwordx4 %s, v3, s[12:15], s31 offen offset:%d %s' % (fA(st, t), t * 1024, pol)])
        L.append(['s_add_u32 s34, s31, 4096', 'buffer_load_dwordx4 %s, v3, s[12:15], s34 offen %s' % (fA(st, 4), pol),
                  's_add_u32 s30, s30, %d' % (4 * 9216), 's_add_u32 s31, s31, %d' % (4 * 5120)])
        return L
    for st in range(3):
        for grp in loads(st):
            for t in grp: e(t)
    for r in range(ACC, ACC + 180):
        e('v_mov_b32 v%d, 0' % r)
    e('s_mov_b32 s35, 8')
    if getattr(P,'prof',False): e('s_memtime s[54:55]'); e('s_waitcnt lgkmcnt(0)')
    P.block('k2_loop')
    e('K2_LOOP:')
    for st in range(4):
        L = loads((st + 3) % 4)
        g = 0; li = 0
        for t in range(5):
            for qt in range(9):
                e('v_mfma_f32_16x16x32_bf16 %s, %s, %s, %s' % (acc(t, qt), fA(st, t), fB(st, qt), acc(t, qt)))
                if g % 3 == 1 and li < len(L):
                    for x in L[li]: e(x)
                    li += 1
                g += 1
        assert li == len(L)
    e('s_sub_u32 s35, s35, 1')
    e('s_cmp_lg_u32 s35, 0')
    e('s_cbranch_scc1 K2_LOOP')
    P.block('k2_mid')
    if getattr(P,'prof',False): e('s_memtime s[56:57]'); e('s_waitcnt lgkmcnt(0)')
    e('s_waitcnt vmcnt(0)')
    units = {0: [('P', 0, q) for q in range(0, 5)] + [('S', 4, 0)],
             1: [('P', 0, q) for q in range(5, 9)] + [('P', 2, 0)] + [('S', 4, 1)],
             2: [('P', 2, q) for q in range(1, 5)] + [('S', 4, q) for q in (2, 3, 4)],
             3: [('P', 2, q) for q in range(5, 9)] + [('S', 4, q) for q in (5, 6, 7, 8)]}
    owner = {}
    for w, us in units.items():
        for (k, t, q) in us:
            owner[(t, q)] = w
            if k == 'P': owner[(t + 1, q)] = w
    assert len(owner) == 45
    e('v_and_b32 v4, 15, v2')
    e('v_lshrrev_b32 v5, 4, v2')
    e('s_mul_i32 s26, s24, 144')
    e('v_add_u32 v4, s26, v4')
    e('s_movk_i32 s27, 2560')
    e('v_mul_lo_u32 v4, v4, s27')
    e('s_mul_i32 s26, s23, 1280')
    e('s_mul_i32 s27, s25, 160')
    e('s_add_u32 s26, s26, s27')
    e('v_add_u32 v4, s26, v4')
    e('v_lshlrev_b32 v6, 4, v5')
    e('v_add_u32 v6, v4, v6')
    e('v_lshlrev_b32 v7, 3, v5')
    e('v_add_u32 v7, v4, v7')
    e('v_add_u32 v7, 128, v7')
    e('v_add_u32 v8, 0x10000, v3')
    e('v_add_u32 v9, 0x20000, v3')
    for w in range(1, 4):
        e('s_cmp_eq_u32 s20, %d' % w)
        e('s_cbranch_scc1 K2_W%d' % w)
    paths = []
    def ldsaddr(off):
        if off < 0x10000: return 'v3', off
        if off < 0x20000: return 'v8', off - 0x10000
        return 'v9', off - 0x20000
    for w in range(4):
        P.block('k2_w%d' % w)
        e('K2_W%d:' % w)
        for t in range(5):
            for qt in range(9):
                o = owner[(t, qt)]
                if o == w: continue
                idx = w if w < o else w - 1
                a, off = ldsaddr(((t * 9 + qt) * 3 + idx) * 1024)
                e('ds_write_b128 %s, %s offset:%d' % (a, acc(t, qt), off))
        e('s_waitcnt lgkmcnt(0)')
        e('s_barrier')
        tmp = 16
        slot = 0
        def sum_tile(t, qt):
            nonlocal slot
            base = tmp + 12 * (slot % 4); slot += 1
            for idx in range(3):
                a, off = ldsaddr(((t * 9 + qt) * 3 + idx) * 1024)
                e('ds_read_b128 v[%d:%d], %s offset:%d' % (base + 4 * idx, base + 4 * idx + 3, a, off))
            return base
        tiles = []
        for (k, t, q) in units[w]:
            tiles.append((k, t, q))
        pend = []
        def issue(u):
            k, t, q = u
            b0 = sum_tile(t, q)
            b1 = sum_tile(t + 1, q) if k == 'P' else None
            return (u, b0, b1)
        def finish(pu):
            (k, t, q), b0, b1 = pu
            for (tt, b) in ((t, b0), (t + 1, b1)):
                if b is None: continue
                r = ACC + 4 * (tt * 9 + q)
                for i in range(4):
                    e('v_add_f32 v%d, v%d, v%d' % (b + i, b + i, b + 4 + i))
                    e('v_add_f32 v%d, v%d, v%d' % (r + i, r + i, b + 8 + i))
                for i in range(4):
                    e('v_add_f32 v%d, v%d, v%d' % (r + i, r + i, b + i))
            r0 = ACC + 4 * (t * 9 + q)
            if k == 'P':
                r1 = ACC + 4 * ((t + 1) * 9 + q)
                e('v_cvt_pk_bf16_f32 v10, v%d, v%d' % (r0, r0 + 1))
                e('v_cvt_pk_bf16_f32 v11, v%d, v%d' % (r0 + 2, r0 + 3))
                e('v_cvt_pk_bf16_f32 v12, v%d, v%d' % (r1, r1 + 1))
                e('v_cvt_pk_bf16_f32 v13, v%d, v%d' % (r1 + 2, r1 + 3))
                e('s_mov_b32 s26, %d' % (q * 16 * 2560 + (t // 2) * 64))
                e('buffer_store_dwordx4 v[10:13], v6, s[16:19], s26 offen')
            else:
                e('v_cvt_pk_bf16_f32 v14, v%d, v%d' % (r0, r0 + 1))
                e('v_cvt_pk_bf16_f32 v15, v%d, v%d' % (r0 + 2, r0 + 3))
                e('s_mov_b32 s26, %d' % (q * 16 * 2560))
                e('buffer_store_dwordx2 v[14:15], v7, s[16:19], s26 offen')
        prev = None
        for u in tiles:
            cur = issue(u)
            if prev is not None: finish(prev)
            prev = cur
        finish(prev)
        if getattr(P,'prof',False):
            e('s_memtime s[58:59]'); e('s_memrealtime s[50:51]'); e('s_waitcnt lgkmcnt(0)')
            for i, sr in enumerate((52, 54, 56, 58, 48, 50)): e('v_mov_b32 v%d, s%d' % (16 + i, sr))
            e('s_lshl_b32 s37, s2, 2'); e('s_add_u32 s37, s37, s20'); e('s_lshl_b32 s37, s37, 6'); e('v_mov_b32 v10, s37')
            e('s_add_u32 s8, s4, 0x4100000'); e('s_addc_u32 s9, s5, 0'); e('s_mov_b32 s10, 0x100000')
            e('v_cmp_eq_u32 vcc, 0, v2'); e('s_and_saveexec_b64 s[62:63], vcc'); e('s_cbranch_execz K2_DONE')
            e('buffer_store_dwordx4 v[16:19], v10, s[8:11], 0 offen'); e('buffer_store_dwordx4 v[20:23], v10, s[8:11], 0 offen offset:16')
        e('s_endpgm')
        paths.append(['k2_pre', 'k2_loop', 'k2_loop', 'k2_mid', 'k2_w%d' % w])
    P.block('k2_end')
    e('K2_DONE:')
    e('s_endpgm')
    desc = '''.amdhsa_kernel %s
  .amdhsa_next_free_vgpr 512
  .amdhsa_next_free_sgpr 64
  .amdhsa_accum_offset 256
  .amdhsa_group_segment_fixed_size 0
  .amdhsa_kernarg_size 104
  .amdhsa_user_sgpr_count 2
  .amdhsa_user_sgpr_kernarg_segment_ptr 1
  .amdhsa_system_sgpr_workgroup_id_x 1
.end_amdhsa_kernel
''' % name
    return paths, desc
```

```python
from asmlib import *
import math, struct

WF_OFF = 0x2400000
CSCALE = math.log2(math.e) / math.sqrt(128.0)
def f32bits(x): return struct.unpack('<I', struct.pack('<f', x))[0]

S_X, S_WQ, S_K, S_V, S_WS, S_WO = 8, 12, 16, 20, 24, 28
sW, sPAR, sP, sB, sHP = 32, 33, 34, 35, 36
sT0, sT1, sT2, sT3 = 37, 38, 39, 40
sXO, sWO_, sM4, sCNT, sM5, sWFO = 41, 42, 43, 44, 45, 46
sKO, sHEAD, sGIVEN, sOFB, sC, sBIG = 47, 48, 49, 50, 51, 52
sVO = 54
sOT = 56
def srd(b): return 's[%d:%d]' % (b, b + 3)
def vr(b, n=4): return 'v[%d:%d]' % (b, b + n - 1)
def ar(b, n=4): return 'a[%d:%d]' % (b, b + n - 1)

XB = 65536; XSLOT = 36864; WSLOT = 16384
vKD = 34
vVD = 38

KVPOL = ['nt']
def kdma(pslot, tag, soff=None):
    G = []
    for i in range(4):
        g = []
        if i == 0: g.append('s_add_u32 m0, s%d, %d' % (sM4, pslot * 16384))
        g.append(('buffer_load_dwordx4 v%d, %s, s%d offen offset:%d %s lds' % (vKD + i, srd(S_K), sKO, i * 1024, KVPOL[0]), tag))
        G.append(g)
    G[-1].append('s_add_u32 s%d, s%d, 16384' % (sKO, sKO))
    return G
def vdma(pslot, tag):
    G = []
    for i in range(4):
        g = []
        if i == 0: g.append('s_add_u32 m0, s%d, %d' % (sM4, 65536 + pslot * 16384))
        g.append(('buffer_load_dwordx4 v%d, %s, s%d offen offset:%d %s lds' % (vVD + i % 2, srd(S_V), sVO, i * 1024, KVPOL[0]), tag))
        G.append(g)
    G[-1].append('s_add_u32 s%d, s%d, 16384' % (sVO, sVO))
    return G

def gen_k1(P, name='attn_kernel'):
    KVPOL[0] = P.opt.get('kvpol', 'nt')
    spol = 'sc1' if P.opt.get('fused', '1') == '1' else P.opt.get('wfpol', '')
    e = P.e
    def emit_groups(G):
        for g in G:
            for x in g:
                if isinstance(x, tuple): e(x[0], tag=x[1])
                else: e(x)
    P.block('k1_pre')
    e('.p2align 8')
    e('.globl %s' % name)
    e('.type %s,@function' % name)
    e('%s:' % name)
    e('s_cmp_ge_u32 s2, 256')
    e('s_cbranch_scc1 K1_DONE')
    if getattr(P, 'prof', False): e('s_memrealtime s[100:101]')
    e('s_load_dwordx16 s[64:79], s[0:1], 0')
    e('s_load_dwordx8 s[80:87], s[0:1], 64')
    e('s_load_dwordx2 s[88:89], s[0:1], 96')
    e('v_lshrrev_b32 v1, 6, v0')
    e('v_and_b32 v2, 63, v0')
    e('v_readfirstlane_b32 s%d, v1' % sW)
    e('v_and_b32 v3, 15, v2')
    e('v_lshrrev_b32 v4, 4, v2')
    e('v_lshrrev_b32 v5, 2, v3')
    e('v_and_b32 v6, 3, v2')
    e('v_lshlrev_b32 v7, 4, v2')
    e('s_and_b32 s%d, s%d, 1' % (sPAR, sW))
    e('s_and_b32 s37, s2, 7')
    e('s_lshr_b32 s38, s2, 3')
    e('s_lshr_b32 s%d, s37, 2' % sP)
    if P.opt.get('map', 'local') == 'local':
        e('s_and_b32 s39, s37, 3')
        e('s_lshl_b32 s39, s39, 1')
        e('s_lshr_b32 s40, s38, 4')
        e('s_add_u32 s%d, s39, s40' % sB)
        e('s_and_b32 s%d, s38, 15' % sHP)
    else:
        e('s_and_b32 s39, s37, 2')
        e('s_lshl_b32 s39, s39, 1')
        e('s_and_b32 s40, s38, 3')
        e('s_add_u32 s%d, s39, s40' % sB)
        e('s_and_b32 s39, s37, 1')
        e('s_lshl_b32 s39, s39, 3')
        e('s_lshr_b32 s40, s38, 2')
        e('s_add_u32 s%d, s39, s40' % sHP)
    e('s_lshl_b32 s%d, s%d, 12' % (sM4, sW))
    vXD, vWD = 40, 45
    e('v_lshrrev_b32 v11, 3, v2')
    e('v_and_b32 v12, 7, v2')
    e('v_lshrrev_b32 v13, 1, v11')
    e('s_movk_i32 s37, 1280')
    e('v_mul_lo_u32 v11, v11, s37')
    e('s_mul_i32 s37, s%d, %d' % (sW, 72 * 1280))
    for i in range(4):
        e('s_add_u32 s38, s%d, %d' % (sPAR, i))
        e('s_and_b32 s38, s38, 1')
        e('s_lshl_b32 s38, s38, 2')
        e('v_or_b32 v14, s38, v13')
        e('v_xor_b32 v14, v14, v12')
        e('v_lshlrev_b32 v14, 4, v14')
        e('v_add_u32 v14, v14, v11')
        e('s_add_u32 s38, s37, %d' % (i * (8 * 1280 - 1024)))
        e('v_add_u32 v%d, s38, v14' % (vXD + i))
    e('s_mul_i32 s%d, s%d, 9216' % (sM5, sW))
    e('s_add_u32 s%d, s%d, %d' % (sM5, sM5, XB))
    e('v_lshrrev_b32 v12, 5, v2')
    e('v_and_b32 v13, 31, v2')
    e('s_lshl_b32 s37, s%d, 2' % sPAR)
    e('v_or_b32 v14, s37, v12')
    e('v_lshlrev_b32 v12, 13, v12')
    e('s_lshl_b32 s37, s%d, 16' % sW)
    e('v_add_u32 v12, s37, v12')
    for i in range(4):
        e('v_or_b32 v15, %d, v14' % (2 * (i & 1)))
        e('v_lshlrev_b32 v15, 1, v15')
        e('v_xor_b32 v15, v15, v13')
        e('v_lshlrev_b32 v15, 4, v15')
        e('v_add_u32 v15, v15, v12')
        e('v_add_u32 v%d, %d, v15' % (vWD + i, i * (16384 - 1024)))
    e('s_waitcnt lgkmcnt(0)')
    e('s_cmp_eq_u32 s%d, 0' % sP)
    e('s_cselect_b64 s[90:91], s[64:65], s[74:75]')
    e('s_cselect_b64 s[96:97], s[70:71], s[80:81]')
    e('s_cselect_b64 s[92:93], s[66:67], s[76:77]')
    e('s_cselect_b64 s[94:95], s[68:69], s[78:79]')
    e('s_mul_i32 s37, s%d, 368640' % sB)
    e('s_add_u32 s%d, s90, s37' % S_X)
    e('s_addc_u32 s%d, s91, 0' % (S_X + 1))
    e('s_mov_b32 s%d, 368640' % (S_X + 2))
    e('s_mov_b32 s%d, 0x00020000' % (S_X + 3))
    e('s_mov_b32 s%d, s96' % S_WQ)
    e('s_mov_b32 s%d, s97' % (S_WQ + 1))
    e('s_mov_b32 s%d, 5242880' % (S_WQ + 2))
    e('s_mov_b32 s%d, 0x00020000' % (S_WQ + 3))
    e('s_mov_b32 s%d, 0' % sXO)
    e('s_lshl_b32 s%d, s%d, 9' % (sWO_, sHP))
    xpol = P.opt.get('xpol', 'nt'); wpol = P.opt.get('wpol', 'nt')
    def wdma(slot, tag):
        G = []
        for i in range(4):
            g = []
            if i == 0: g.append('s_add_u32 m0, s%d, %d' % (sM4, slot * WSLOT))
            g.append(('buffer_load_dwordx4 v%d, %s, s%d offen offset:%d %s lds' % (vWD + i, srd(S_WQ), sWO_, i * 1024, wpol), tag))
            G.append(g)
        G[-1].append('s_add_u32 s%d, s%d, %d' % (sWO_, sWO_, 32 * 8192))
        return G
    def xdma(slot, tag):
        G = []
        for i in range(9):
            g = []
            if i % 4 == 0:
                g.append('s_add_u32 m0, s%d, %d' % (sM5, slot * XSLOT + i * 1024))
                if i: g.append('s_add_u32 s%d, s%d, %d' % (sT0, sXO, i * 8 * 1280))
            g.append(('buffer_load_dwordx4 v%d, %s, s%d offen offset:%d %s lds' % (vXD + i % 4, srd(S_X), sT0 if i >= 4 else sXO, (i % 4) * 1024, xpol), tag))
            G.append(g)
        G[-1].append('s_add_u32 s%d, s%d, 128' % (sXO, sXO))
        return G
    emit_groups(wdma(0, 'q0'))
    emit_groups(xdma(0, 'q0'))
    e('s_lshr_b32 s37, s2, 7')
    e('s_cmp_eq_u32 s37, 0')
    e('s_cselect_b64 s[98:99], s[72:73], s[82:83]')
    e('s_and_b32 s38, s2, 127')
    e('s_mul_i32 s39, s38, 40960')
    e('s_add_u32 s%d, s98, s39' % S_WO)
    e('s_addc_u32 s%d, s99, 0' % (S_WO + 1))
    e('s_mov_b32 s%d, 40960' % (S_WO + 2))
    e('s_mov_b32 s%d, 0x00020000' % (S_WO + 3))
    e('s_lshl_b32 s39, s37, 3')
    e('s_lshl_b32 s40, s%d, 1' % sW)
    e('s_add_u32 s39, s39, s40')
    e('s_lshl_b32 s39, s39, 7')
    e('s_add_u32 s39, s39, s38')
    e('s_mul_i32 s%d, s39, 5120' % sWFO)
    e('s_add_u32 s%d, s%d, %d' % (sWFO, sWFO, WF_OFF))
    WOS = 139264
    def wodma(half, tag):
        G = [['s_mul_i32 s%d, s%d, 5120' % (sT2, sW), 's_add_u32 m0, s%d, %d' % (sT2, WOS), 's_add_u32 s%d, s%d, %d' % (sT3, sT2, half * 20480)]]
        for i in range(4):
            G.append([('buffer_load_dwordx4 v7, %s, s%d offen offset:%d nt lds' % (srd(S_WO), sT3, i * 1024), tag)])
        G.append(['s_add_u32 m0, s%d, %d' % (sT2, WOS + 4096), 's_add_u32 s%d, s%d, 4096' % (sT3, sT3),
                  ('buffer_load_dwordx4 v7, %s, s%d offen nt lds' % (srd(S_WO), sT3), tag)])
        return G
    emit_groups(wodma(0, 'q1'))
    emit_groups(wdma(1, 'q1'))
    emit_groups(xdma(1, 'q2'))
    emit_groups(wdma(2, 'q2'))
    emit_groups(wdma(3, 'q3'))
    e('s_lshl_b32 s37, s%d, 5' % sB)
    e('s_lshl_b32 s38, s%d, 1' % sHP)
    e('s_add_u32 s37, s37, s38')
    e('s_lshl_b32 s37, s37, 18')
    for (S, src) in ((S_K, 92), (S_V, 94)):
        e('s_add_u32 s%d, s%d, s37' % (S, src))
        e('s_addc_u32 s%d, s%d, 0' % (S + 1, src + 1))
        e('s_mov_b32 s%d, 524288' % (S + 2))
        e('s_mov_b32 s%d, 0x00020000' % (S + 3))
    if P.opt.get('tlb', '1') == '1':
        e('buffer_load_dword v50, v7, %s, 0 offen nt' % srd(S_K), tag='tl')
        e('buffer_load_dword v51, v7, %s, 0 offen nt' % srd(S_V), tag='tl')
        e('s_mov_b32 s37, 262144')
        e('buffer_load_dword v52, v7, %s, s37 offen nt' % srd(S_K), tag='tl')
        e('buffer_load_dword v53, v7, %s, s37 offen nt' % srd(S_V), tag='tl')
    e('s_mov_b32 s%d, s88' % S_WS)
    e('s_mov_b32 s%d, s89' % (S_WS + 1))
    e('s_mov_b32 s%d, %d' % (S_WS + 2, WF_OFF + 10485760))
    e('s_mov_b32 s%d, 0x00020000' % (S_WS + 3))
    e('s_mov_b32 s%d, 0x%08x' % (sC, f32bits(CSCALE)))
    e('s_mov_b32 s%d, 0x%08x' % (sBIG, f32bits(2.0 ** 40)))
    e('v_lshlrev_b32 v12, 2, v4')
    e('v_add_u32 v12, v12, v5')
    e('s_movk_i32 s37, 1280')
    e('v_mul_lo_u32 v12, v12, s37')
    e('s_mul_i32 s37, s%d, 320' % sW)
    e('s_add_u32 s37, s37, %d' % WOS)
    e('v_add_u32 v12, s37, v12')
    e('v_lshlrev_b32 v13, 4, v6')
    e('v_add_u32 v8, v12, v13')
    e('v_lshlrev_b32 v14, 3, v6')
    e('v_add_u32 v9, v12, v14')
    WFR = 152
    def wo_reads(half):
        L = []
        for g2 in range(2):
            for t in range(5):
                r = WFR + 4 * (g2 * 5 + t) + 2 * half
                if t < 4: a = 'v8'; off = g2 * 160 + (t // 2) * 64 + (t % 2) * 8
                else: a = 'v9'; off = g2 * 160 + 128
                L.append('ds_read_b64_tr_b16 %s, %s offset:%d' % (ar(r, 2), a, off))
        return L
    def wo_stores():
        L = []
        for g2 in range(2):
            L.append('s_add_u32 s%d, s%d, %d' % (sT2, sWFO, g2 * 128 * 5120))
            L.append('s_add_u32 s%d, s%d, 4096' % (sT3, sT2))
            for t in range(5):
                r = WFR + 4 * (g2 * 5 + t)
                if t < 4: L.append(('buffer_store_dwordx4 %s, v7, %s, s%d offen offset:%d' % (ar(r), srd(S_WS), sT2, t * 1024) + ' ' + spol, 'wfst'))
                else: L.append(('buffer_store_dwordx4 %s, v7, %s, s%d offen' % (ar(r), srd(S_WS), sT3) + ' ' + spol, 'wfst'))
        return L
    if getattr(P, 'prof', False):
        e('s_mov_b32 s61, s88'); e('s_mov_b32 s55, s89')
        e('s_memrealtime s[96:97]'); e('s_waitcnt lgkmcnt(0)')
        e('s_sub_u32 s100, s96, s100'); e('s_mov_b32 s101, 0')
    P.stamp(0)
    vXA, vXS = 16, 10
    vWX, vWY = 18, 26
    e('v_lshrrev_b32 v12, 1, v3')
    e('v_lshlrev_b32 v13, 7, v3')
    e('s_lshl_b32 s37, s%d, 13' % sW)
    e('s_add_u32 s37, s37, %d' % XB)
    e('s_lshr_b32 s38, s%d, 1' % sW)
    e('s_lshl_b32 s38, s38, 11')
    e('s_add_u32 s38, s38, %d' % (XB + 256 * 128))
    for ks in range(2):
        e('v_add_u32 v14, %d, v4' % (4 * ks))
        e('v_xor_b32 v14, v14, v12')
        e('v_lshlrev_b32 v14, 4, v14')
        e('v_add_u32 v14, v14, v13')
        e('v_add_u32 v%d, s37, v14' % (vXA + ks))
        e('v_add_u32 v%d, s38, v14' % (vXS + ks))
    e('v_and_b32 v12, 1, v4')
    e('v_lshlrev_b32 v12, 2, v12')
    e('v_or_b32 v12, v12, v5')
    e('v_lshlrev_b32 v13, 3, v4')
    e('v_add_u32 v13, v13, v5')
    e('v_lshlrev_b32 v13, 9, v13')
    e('s_lshl_b32 s38, s%d, 8' % sPAR)
    e('s_xor_b32 s39, s38, 256')
    e('v_lshlrev_b32 v12, 1, v12')
    for ds in range(4):
        e('v_add_u32 v14, %d, v6' % (4 * ds))
        e('v_xor_b32 v14, v14, v12')
        e('v_lshlrev_b32 v14, 4, v14')
        e('v_add_u32 v14, v14, v13')
        e('v_add_u32 v%d, s38, v14' % (vWX + ds))
        e('v_add_u32 v%d, s39, v14' % (vWY + ds))
    e('v_lshlrev_b32 v12, 8, v4')
    e('v_add_u32 v12, s%d, v12' % sM4)
    for i in range(4):
        e('v_add_u32 v13, %d, v4' % (4 * i))
        e('v_xor_b32 v13, v13, v3')
        e('v_lshlrev_b32 v13, 4, v13')
        e('v_add_u32 v%d, v13, v12' % (vKD + i))
    for i in range(2):
        e('v_add_u32 v13, %d, v4' % (4 * i))
        e('v_lshlrev_b32 v13, 1, v13')
        e('v_xor_b32 v13, v13, v3')
        e('v_lshlrev_b32 v13, 4, v13')
        e('v_add_u32 v%d, v13, v12' % (vVD + i))
    e('s_mov_b32 s%d, 0' % sKO)
    e('s_mov_b32 s%d, 0' % sVO)
    e('v_lshlrev_b32 v49, 6, v2')
    e('v_add_u32 v49, s%d, v49' % sM4)
    e('s_mov_b32 s53, %d' % (int(P.opt.get('pf0', 2)) * 16384))

    tiles = [('X', t0, q) for t0 in range(8) for q in range(5)] + [('Y', t0, q) for t0 in range(8) for q in range(4)]
    accmap = {}
    nv = 0; na = 0
    for tl in [t for t in tiles if t[0] == 'Y'] + [t for t in tiles if t[0] == 'X']:
        if nv < 48:
            accmap[tl] = ('v', 64 + 4 * nv); nv += 1
        else:
            accmap[tl] = ('a', 4 * na); na += 1
    def acc(g, t0, q):
        k, b = accmap[(g, t0, q)]; return '%s[%d:%d]' % (k, b, b + 3)
    ARING = 96
    BF = 112
    def bfrag(par, q): return ar(BF + 20 * par + 4 * q)
    def aslot(i): return ar(ARING + 4 * (i % 4))
    def a_loads(c, i):
        va = (vWX + i // 2) if i < 8 else (vWY + (i - 8) // 2)
        r = ARING + 4 * (i % 4); o = (c % 4) * WSLOT + 8 * (i % 2)
        return ['ds_read_b64_tr_b16 %s, v%d offset:%d' % (ar(r, 2), va, o), 'ds_read_b64_tr_b16 %s, v%d offset:%d' % (ar(r + 2, 2), va, o + 2048)]
    def b_loads(c):
        par = c % 2; o = ((c // 2) % 2) * XSLOT
        L = ['ds_read_b128 %s, v%d offset:%d' % (bfrag(par, q), vXA + par, o + q * 2048) for q in range(4)]
        L.append('ds_read_b128 %s, v%d offset:%d' % (bfrag(par, 4), vXS + par, o))
        return L
    import k1b
    k1b.early_setup(P)
    P.waitvm(['q0'])
    e('s_barrier')
    for x in b_loads(0): e(x)
    for i in range(4):
        for x in a_loads(0, i): e(x)
    P.stamp(1)

    seq = [(i, q) for i in range(16) for q in range(5 if i < 8 else 4)]
    NQ = len(seq)
    first = {}; lastuse = {}
    for g, (i, q) in enumerate(seq):
        first.setdefault(i, g); lastuse[i] = g
    GBQ = 58
    def emit_qchunk(c, dma_groups, need_tag, last=False, post=None, extra=None):
        par = c % 2
        cap = [2] * NQ
        fill = [[] for _ in range(NQ)]
        for i in range(0, 16, 2):
            if first[i] > 0: cap[first[i] - 1] -= 1
        def place(g, items):
            for x in items:
                while cap[g] <= 0: g += 1
                fill[g].append(x); cap[g] -= 1
            return g
        for i in range(4, 16):
            place(lastuse[i - 4], a_loads(c, i))
        assert lastuse[11] < GBQ
        cap[GBQ] -= 2; fill[GBQ].append(('BAR',))
        if not last:
            g = place(GBQ + 1, b_loads(c + 1))
            for i in range(4):
                place(max(lastuse[12 + i], GBQ + 1), a_loads(c + 1, i))
        if post: place(GBQ + 1, post)
        if extra:
            for (g0, items) in extra: place(g0, items)
        g = 1
        for grp in dma_groups:
            for x in grp:
                while cap[min(g, NQ - 1)] <= 0 and g < NQ - 1: g += 1
                g = min(g, NQ - 1)
                fill[g].append(x); cap[g] -= 1
            g += int(P.opt.get('qsp', 3))
        for g, (i, q) in enumerate(seq):
            grp = 'X' if i < 8 else 'Y'
            a = acc(grp, i % 8, q)
            x = aslot(i + 1) if (i % 2 == 0 and g == first[i]) else None
            e('v_mfma_f32_16x16x32_bf16 %s, %s, %s, %s' % (a, aslot(i), bfrag(par, q), a if c != 0 else '0'), xrd=x)
            for x in fill[g]:
                if isinstance(x, tuple) and x[0] == 'BAR':
                    P.acc_begin()
                    P.waitvm([need_tag] if isinstance(need_tag, str) else need_tag)
                    e('s_waitcnt lgkmcnt(0)')
                    e('s_barrier')
                    P.acc_end(0)
                elif isinstance(x, tuple): e(x[0], tag=x[1])
                else: e(x)
    P.abl = P.opt.get('qabl', '').split(',')
    P.block('k1_q0')
    emit_qchunk(0, [], 'q1', post=wo_reads(0))
    e('s_mov_b32 s%d, 4' % sCNT)
    if P.opt.get('qst') == '1': P.stamp(8)
    P.block('k1_qloop')
    e('K1_QLOOP:')
    for cc in range(1, 5):
        G = wdma((cc + 3) % 4, 'q%d' % ((cc + 3) % 4))
        if cc % 2 == 0:
            GX = xdma((cc // 2 + 1) % 2, 'q%d' % ((cc + 2) % 4))
            G = GX + G
        pf = int(P.opt.get('pf', 0))
        tl = []
        for k in range(pf):
            tl.append([('buffer_load_dword v50, v49, %s, s53 offen %s' % (srd(S_K), P.opt.get('pfpol', 'nt')), 'pf')])
            tl.append([('buffer_load_dword v51, v49, %s, s53 offen %s' % (srd(S_V), P.opt.get('pfpol', 'nt')), 'pf'), 's_add_u32 s53, s53, 16384'])
        for k, g in enumerate(tl):
            if k * 4 // len(tl) == cc - 1: G = G + [g]
        emit_qchunk(cc, G, 'q%d' % ((cc + 1) % 4))
    e('s_sub_u32 s%d, s%d, 1' % (sCNT, sCNT))
    e('s_cmp_lg_u32 s%d, 0' % sCNT)
    e('s_cbranch_scc1 K1_QLOOP')
    P.abl = ()
    P.block('k1_qtail')
    if P.opt.get('qst') == '1': P.stamp(9)
    if P.opt.get('qst') == '2': P.stamp(11)
    tv = P.opt.get('tailv', '0')
    if tv == '0':
        emit_qchunk(17, wodma(1, 'wo1') + kdma(0, 'p0'), 'q2')
        if P.opt.get('qst') == '2': P.stamp(8)
        emit_qchunk(18, vdma(0, 'p0') + kdma(1, 'p1') + vdma(1, 'p1'), 'q3')
        if P.opt.get('qst') == '2': P.stamp(9)
        G19 = []
    else:
        emit_qchunk(17, wodma(1, 'wo1') + kdma(0, 'p0'), 'q2')
        emit_qchunk(18, vdma(0, 'p0') + kdma(1, 'p1'), 'q3')
        G19 = vdma(1, 'p1')
    if int(P.opt.get('kahead', 3)) == 3: G19 = G19 + kdma(2, 'p2')
    emit_qchunk(19, G19, 'wo1', last=True, post=wo_reads(1))
    if P.opt.get('qst') == '2': P.stamp(10)
    for x in wo_stores():
        if isinstance(x, tuple): e(x[0], tag=x[1])
        else: e(x)
    if P.opt.get('qst') != '2':
        e('s_mov_b32 s%d, s86' % S_WO)
        e('s_mov_b32 s%d, s87' % (S_WO + 1))
    e('s_mov_b32 s%d, 256' % (S_WO + 2))
    if P.opt.get('fused', '1') == '1':
        e('s_cmp_lg_u32 s%d, 0' % sW)
        e('s_cbranch_scc1 K1_NOX')
        e('s_getreg_b32 s%d, hwreg(HW_REG_XCC_ID)' % sT0)
        e('s_and_b32 s%d, s%d, 15' % (sT0, sT0))
        e('s_lshl_b32 s%d, 1, s%d' % (sT0, sT0))
        e('s_lshl_b32 s%d, s%d, 3' % (sT1, sP))
        e('s_add_u32 s%d, s%d, s%d' % (sT1, sT1, sB))
        e('s_lshl_b32 s%d, s%d, 3' % (sT1, sT1))
        e('s_add_u32 s%d, s%d, 128' % (sT1, sT1))
        e('v_mov_b32 v60, s%d' % sT1)
        e('v_mov_b32 v61, s%d' % sT0)
        e('v_mov_b32 v62, 1')
        e('v_cmp_eq_u32 vcc, 0, v2')
        e('s_and_saveexec_b64 s[62:63], vcc')
        e('buffer_atomic_or v61, v60, %s, 0 offen sc1' % srd(S_WO))
        e('buffer_atomic_add v62, v60, %s, 0 offen offset:4 sc1' % srd(S_WO))
        e('s_mov_b64 exec, s[62:63]')
        e('K1_NOX:')
    P.stamp(2)
    return dict(accmap=accmap)
```

```python
from asmlib import *
import math, struct

WF_OFF = 0x2400000
CSCALE = math.log2(math.e) / math.sqrt(128.0)
def f32bits(x): return struct.unpack('<I', struct.pack('<f', x))[0]

S_X, S_WQ, S_K, S_V, S_WS, S_WO = 8, 12, 16, 20, 24, 28
sW, sPAR, sP, sB, sHP = 32, 33, 34, 35, 36
sT0, sT1, sT2, sT3 = 37, 38, 39, 40
sXO, sWO_, sM4, sCNT, sM5, sWFO = 41, 42, 43, 44, 45, 46
sKO, sHEAD, sGIVEN, sOFB, sC, sBIG = 47, 48, 49, 50, 51, 52
sVO = 54
sOT = 56
def srd(b): return 's[%d:%d]' % (b, b + 3)
def vr(b, n=4): return 'v[%d:%d]' % (b, b + n - 1)
def ar(b, n=4): return 'a[%d:%d]' % (b, b + n - 1)

XB = 65536; XSLOT = 36864; WSLOT = 16384
vKD = 34
vVD = 38

KVPOL = ['nt']
def kdma(pslot, tag, soff=None):
    G = []
    for i in range(4):
        g = []
        if i == 0: g.append('s_add_u32 m0, s%d, %d' % (sM4, pslot * 16384))
        g.append(('buffer_load_dwordx4 v%d, %s, s%d offen offset:%d %s lds' % (vKD + i, srd(S_K), sKO, i * 1024, KVPOL[0]), tag))
        G.append(g)
    G[-1].append('s_add_u32 s%d, s%d, 16384' % (sKO, sKO))
    return G
def vdma(pslot, tag):
    G = []
    for i in range(4):
        g = []
        if i == 0: g.append('s_add_u32 m0, s%d, %d' % (sM4, 65536 + pslot * 16384))
        g.append(('buffer_load_dwordx4 v%d, %s, s%d offen offset:%d %s lds' % (vVD + i % 2, srd(S_V), sVO, i * 1024, KVPOL[0]), tag))
        G.append(g)
    G[-1].append('s_add_u32 s%d, s%d, 16384' % (sVO, sVO))
    return G

def gen_k1(P, name='attn_kernel'):
    KVPOL[0] = P.opt.get('kvpol', 'nt')
    spol = 'sc1' if P.opt.get('fused', '1') == '1' else P.opt.get('wfpol', '')
    e = P.e
    def emit_groups(G):
        for g in G:
            for x in g:
                if isinstance(x, tuple): e(x[0], tag=x[1])
                else: e(x)
    P.block('k1_pre')
    e('.p2align 8')
    e('.globl %s' % name)
    e('.type %s,@function' % name)
    e('%s:' % name)
    e('s_cmp_ge_u32 s2, 256')
    e('s_cbranch_scc1 K1_DONE')
    if getattr(P, 'prof', False): e('s_memrealtime s[100:101]')
    e('s_load_dwordx16 s[64:79], s[0:1], 0')
    e('s_load_dwordx8 s[80:87], s[0:1], 64')
    e('s_load_dwordx2 s[88:89], s[0:1], 96')
    e('v_lshrrev_b32 v1, 6, v0')
    e('v_and_b32 v2, 63, v0')
    e('v_readfirstlane_b32 s%d, v1' % sW)
    e('v_and_b32 v3, 15, v2')
    e('v_lshrrev_b32 v4, 4, v2')
    e('v_lshrrev_b32 v5, 2, v3')
    e('v_and_b32 v6, 3, v2')
    e('v_lshlrev_b32 v7, 4, v2')
    e('s_and_b32 s%d, s%d, 1' % (sPAR, sW))
    e('s_and_b32 s37, s2, 7')
    e('s_lshr_b32 s38, s2, 3')
    e('s_lshr_b32 s%d, s37, 2' % sP)
    if P.opt.get('map', 'local') == 'local':
        e('s_and_b32 s39, s37, 3')
        e('s_lshl_b32 s39, s39, 1')
        e('s_lshr_b32 s40, s38, 4')
        e('s_add_u32 s%d, s39, s40' % sB)
        e('s_and_b32 s%d, s38, 15' % sHP)
    else:
        e('s_and_b32 s39, s37, 2')
        e('s_lshl_b32 s39, s39, 1')
        e('s_and_b32 s40, s38, 3')
        e('s_add_u32 s%d, s39, s40' % sB)
        e('s_and_b32 s39, s37, 1')
        e('s_lshl_b32 s39, s39, 3')
        e('s_lshr_b32 s40, s38, 2')
        e('s_add_u32 s%d, s39, s40' % sHP)
    e('s_lshl_b32 s%d, s%d, 12' % (sM4, sW))
    vXD, vWD = 40, 45
    e('v_lshrrev_b32 v11, 3, v2')
    e('v_and_b32 v12, 7, v2')
    e('v_lshrrev_b32 v13, 1, v11')
    e('s_movk_i32 s37, 1280')
    e('v_mul_lo_u32 v11, v11, s37')
    e('s_mul_i32 s37, s%d, %d' % (sW, 72 * 1280))
    for i in range(4):
        e('s_add_u32 s38, s%d, %d' % (sPAR, i))
        e('s_and_b32 s38, s38, 1')
        e('s_lshl_b32 s38, s38, 2')
        e('v_or_b32 v14, s38, v13')
        e('v_xor_b32 v14, v14, v12')
        e('v_lshlrev_b32 v14, 4, v14')
        e('v_add_u32 v14, v14, v11')
        e('s_add_u32 s38, s37, %d' % (i * (8 * 1280 - 1024)))
        e('v_add_u32 v%d, s38, v14' % (vXD + i))
    e('s_mul_i32 s%d, s%d, 9216' % (sM5, sW))
    e('s_add_u32 s%d, s%d, %d' % (sM5, sM5, XB))
    e('v_lshrrev_b32 v12, 5, v2')
    e('v_and_b32 v13, 31, v2')
    e('s_lshl_b32 s37, s%d, 2' % sPAR)
    e('v_or_b32 v14, s37, v12')
    e('v_lshlrev_b32 v12, 13, v12')
    e('s_lshl_b32 s37, s%d, 16' % sW)
    e('v_add_u32 v12, s37, v12')
    for i in range(4):
        e('v_or_b32 v15, %d, v14' % (2 * (i & 1)))
        e('v_lshlrev_b32 v15, 1, v15')
        e('v_xor_b32 v15, v15, v13')
        e('v_lshlrev_b32 v15, 4, v15')
        e('v_add_u32 v15, v15, v12')
        e('v_add_u32 v%d, %d, v15' % (vWD + i, i * (16384 - 1024)))
    e('s_waitcnt lgkmcnt(0)')
    e('s_cmp_eq_u32 s%d, 0' % sP)
    e('s_cselect_b64 s[90:91], s[64:65], s[74:75]')
    e('s_cselect_b64 s[96:97], s[70:71], s[80:81]')
    e('s_cselect_b64 s[92:93], s[66:67], s[76:77]')
    e('s_cselect_b64 s[94:95], s[68:69], s[78:79]')
    e('s_mul_i32 s37, s%d, 368640' % sB)
    e('s_add_u32 s%d, s90, s37' % S_X)
    e('s_addc_u32 s%d, s91, 0' % (S_X + 1))
    e('s_mov_b32 s%d, 368640' % (S_X + 2))
    e('s_mov_b32 s%d, 0x00020000' % (S_X + 3))
    e('s_mov_b32 s%d, s96' % S_WQ)
    e('s_mov_b32 s%d, s97' % (S_WQ + 1))
    e('s_mov_b32 s%d, 5242880' % (S_WQ + 2))
    e('s_mov_b32 s%d, 0x00020000' % (S_WQ + 3))
    e('s_mov_b32 s%d, 0' % sXO)
    e('s_lshl_b32 s%d, s%d, 9' % (sWO_, sHP))
    xpol = P.opt.get('xpol', 'nt'); wpol = P.opt.get('wpol', 'nt')
    def wdma(slot, tag):
        G = []
        for i in range(4):
            g = []
            if i == 0: g.append('s_add_u32 m0, s%d, %d' % (sM4, slot * WSLOT))
            g.append(('buffer_load_dwordx4 v%d, %s, s%d offen offset:%d %s lds' % (vWD + i, srd(S_WQ), sWO_, i * 1024, wpol), tag))
            G.append(g)
        G[-1].append('s_add_u32 s%d, s%d, %d' % (sWO_, sWO_, 32 * 8192))
        return G
    def xdma(slot, tag):
        G = []
        for i in range(9):
            g = []
            if i % 4 == 0:
                g.append('s_add_u32 m0, s%d, %d' % (sM5, slot * XSLOT + i * 1024))
                if i: g.append('s_add_u32 s%d, s%d, %d' % (sT0, sXO, i * 8 * 1280))
            g.append(('buffer_load_dwordx4 v%d, %s, s%d offen offset:%d %s lds' % (vXD + i % 4, srd(S_X), sT0 if i >= 4 else sXO, (i % 4) * 1024, xpol), tag))
            G.append(g)
        G[-1].append('s_add_u32 s%d, s%d, 128' % (sXO, sXO))
        return G
    emit_groups(wdma(0, 'q0'))
    emit_groups(xdma(0, 'q0'))
    e('s_lshr_b32 s37, s2, 7')
    e('s_cmp_eq_u32 s37, 0')
    e('s_cselect_b64 s[98:99], s[72:73], s[82:83]')
    e('s_and_b32 s38, s2, 127')
    e('s_mul_i32 s39, s38, 40960')
    e('s_add_u32 s%d, s98, s39' % S_WO)
    e('s_addc_u32 s%d, s99, 0' % (S_WO + 1))
    e('s_mov_b32 s%d, 40960' % (S_WO + 2))
    e('s_mov_b32 s%d, 0x00020000' % (S_WO + 3))
    e('s_lshl_b32 s39, s37, 3')
    e('s_lshl_b32 s40, s%d, 1' % sW)
    e('s_add_u32 s39, s39, s40')
    e('s_lshl_b32 s39, s39, 7')
    e('s_add_u32 s39, s39, s38')
    e('s_mul_i32 s%d, s39, 5120' % sWFO)
    e('s_add_u32 s%d, s%d, %d' % (sWFO, sWFO, WF_OFF))
    WOS = 139264
    def wodma(half, tag):
        G = [['s_mul_i32 s%d, s%d, 5120' % (sT2, sW), 's_add_u32 m0, s%d, %d' % (sT2, WOS), 's_add_u32 s%d, s%d, %d' % (sT3, sT2, half * 20480)]]
        for i in range(4):
            G.append([('buffer_load_dwordx4 v7, %s, s%d offen offset:%d nt lds' % (srd(S_WO), sT3, i * 1024), tag)])
        G.append(['s_add_u32 m0, s%d, %d' % (sT2, WOS + 4096), 's_add_u32 s%d, s%d, 4096' % (sT3, sT3),
                  ('buffer_load_dwordx4 v7, %s, s%d offen nt lds' % (srd(S_WO), sT3), tag)])
        return G
    if P.opt.get('late', '0') != '1':
        emit_groups(wodma(0, 'q1'))
        emit_groups(wdma(1, 'q1'))
        emit_groups(xdma(1, 'q2'))
        emit_groups(wdma(2, 'q2'))
        emit_groups(wdma(3, 'q3'))
    e('s_lshl_b32 s37, s%d, 5' % sB)
    e('s_lshl_b32 s38, s%d, 1' % sHP)
    e('s_add_u32 s37, s37, s38')
    e('s_lshl_b32 s37, s37, 18')
    for (S, src) in ((S_K, 92), (S_V, 94)):
        e('s_add_u32 s%d, s%d, s37' % (S, src))
        e('s_addc_u32 s%d, s%d, 0' % (S + 1, src + 1))
        e('s_mov_b32 s%d, 524288' % (S + 2))
        e('s_mov_b32 s%d, 0x00020000' % (S + 3))
    if P.opt.get('tlb', '1') == '1':
        e('buffer_load_dword v50, v7, %s, 0 offen nt' % srd(S_K), tag='tl')
        e('buffer_load_dword v51, v7, %s, 0 offen nt' % srd(S_V), tag='tl')
        e('s_mov_b32 s37, 262144')
        e('buffer_load_dword v52, v7, %s, s37 offen nt' % srd(S_K), tag='tl')
        e('buffer_load_dword v53, v7, %s, s37 offen nt' % srd(S_V), tag='tl')
    if P.opt.get('cpf', '0') == '1':
        e('s_getpc_b64 s[90:91]')
        e('K1_PC:')
        e('s_sub_u32 s90, s90, K1_PC-%s' % name)
        e('s_subb_u32 s91, s91, 0')
        e('v_lshlrev_b32 v54, 7, v2')
        e('s_lshl_b32 s37, s%d, 13' % sW)
        e('v_add_u32 v54, s37, v54')
        e('s_mov_b32 s38, CODE_END-%s-4' % name)
        for i in range(int(P.opt.get('cpfn', 2))):
            e('v_add_u32 v55, %d, v54' % (i * 32768))
            e('v_min_u32 v55, s38, v55')
            e('global_load_dword v56, v55, s[90:91]', tag='tl')
    e('s_mov_b32 s%d, s88' % S_WS)
    e('s_mov_b32 s%d, s89' % (S_WS + 1))
    e('s_mov_b32 s%d, %d' % (S_WS + 2, WF_OFF + 10485760))
    e('s_mov_b32 s%d, 0x00020000' % (S_WS + 3))
    e('s_mov_b32 s%d, 0x%08x' % (sC, f32bits(CSCALE)))
    e('s_mov_b32 s%d, 0x%08x' % (sBIG, f32bits(2.0 ** 40)))
    e('v_lshlrev_b32 v12, 2, v4')
    e('v_add_u32 v12, v12, v5')
    e('s_movk_i32 s37, 1280')
    e('v_mul_lo_u32 v12, v12, s37')
    e('s_mul_i32 s37, s%d, 320' % sW)
    e('s_add_u32 s37, s37, %d' % WOS)
    e('v_add_u32 v12, s37, v12')
    e('v_lshlrev_b32 v13, 4, v6')
    e('v_add_u32 v8, v12, v13')
    e('v_lshlrev_b32 v14, 3, v6')
    e('v_add_u32 v9, v12, v14')
    WFR = 152
    def wo_reads(half):
        L = []
        for g2 in range(2):
            for t in range(5):
                r = WFR + 4 * (g2 * 5 + t) + 2 * half
                if t < 4: a = 'v8'; off = g2 * 160 + (t // 2) * 64 + (t % 2) * 8
                else: a = 'v9'; off = g2 * 160 + 128
                L.append('ds_read_b64_tr_b16 %s, %s offset:%d' % (ar(r, 2), a, off))
        return L
    def wo_stores():
        L = []
        for g2 in range(2):
            L.append('s_add_u32 s%d, s%d, %d' % (sT2, sWFO, g2 * 128 * 5120))
            L.append('s_add_u32 s%d, s%d, 4096' % (sT3, sT2))
            for t in range(5):
                r = WFR + 4 * (g2 * 5 + t)
                if t < 4: L.append(('buffer_store_dwordx4 %s, v7, %s, s%d offen offset:%d' % (ar(r), srd(S_WS), sT2, t * 1024) + ' ' + spol, 'wfst'))
                else: L.append(('buffer_store_dwordx4 %s, v7, %s, s%d offen' % (ar(r), srd(S_WS), sT3) + ' ' + spol, 'wfst'))
        return L
    if getattr(P, 'prof', False):
        e('s_mov_b32 s61, s88'); e('s_mov_b32 s55, s89')
        e('s_memrealtime s[96:97]'); e('s_waitcnt lgkmcnt(0)')
        e('s_sub_u32 s100, s96, s100'); e('s_mov_b32 s101, 0')
    P.stamp(0)
    vXA, vXS = 16, 10
    vWX, vWY = 18, 26
    e('v_lshrrev_b32 v12, 1, v3')
    e('v_lshlrev_b32 v13, 7, v3')
    e('s_lshl_b32 s37, s%d, 13' % sW)
    e('s_add_u32 s37, s37, %d' % XB)
    e('s_lshr_b32 s38, s%d, 1' % sW)
    e('s_lshl_b32 s38, s38, 11')
    e('s_add_u32 s38, s38, %d' % (XB + 256 * 128))
    for ks in range(2):
        e('v_add_u32 v14, %d, v4' % (4 * ks))
        e('v_xor_b32 v14, v14, v12')
        e('v_lshlrev_b32 v14, 4, v14')
        e('v_add_u32 v14, v14, v13')
        e('v_add_u32 v%d, s37, v14' % (vXA + ks))
        e('v_add_u32 v%d, s38, v14' % (vXS + ks))
    e('v_and_b32 v12, 1, v4')
    e('v_lshlrev_b32 v12, 2, v12')
    e('v_or_b32 v12, v12, v5')
    e('v_lshlrev_b32 v13, 3, v4')
    e('v_add_u32 v13, v13, v5')
    e('v_lshlrev_b32 v13, 9, v13')
    e('s_lshl_b32 s38, s%d, 8' % sPAR)
    e('s_xor_b32 s39, s38, 256')
    e('v_lshlrev_b32 v12, 1, v12')
    for ds in range(4):
        e('v_add_u32 v14, %d, v6' % (4 * ds))
        e('v_xor_b32 v14, v14, v12')
        e('v_lshlrev_b32 v14, 4, v14')
        e('v_add_u32 v14, v14, v13')
        e('v_add_u32 v%d, s38, v14' % (vWX + ds))
        e('v_add_u32 v%d, s39, v14' % (vWY + ds))
    e('v_lshlrev_b32 v12, 8, v4')
    e('v_add_u32 v12, s%d, v12' % sM4)
    for i in range(4):
        e('v_add_u32 v13, %d, v4' % (4 * i))
        e('v_xor_b32 v13, v13, v3')
        e('v_lshlrev_b32 v13, 4, v13')
        e('v_add_u32 v%d, v13, v12' % (vKD + i))
    for i in range(2):
        e('v_add_u32 v13, %d, v4' % (4 * i))
        e('v_lshlrev_b32 v13, 1, v13')
        e('v_xor_b32 v13, v13, v3')
        e('v_lshlrev_b32 v13, 4, v13')
        e('v_add_u32 v%d, v13, v12' % (vVD + i))
    e('s_mov_b32 s%d, 0' % sKO)
    e('s_mov_b32 s%d, 0' % sVO)
    e('v_lshlrev_b32 v49, 6, v2')
    e('v_add_u32 v49, s%d, v49' % sM4)
    e('s_mov_b32 s53, %d' % (int(P.opt.get('pf0', 2)) * 16384))

    tiles = [('X', t0, q) for t0 in range(8) for q in range(5)] + [('Y', t0, q) for t0 in range(8) for q in range(4)]
    accmap = {}
    nv = 0; na = 0
    for tl in [t for t in tiles if t[0] == 'Y'] + [t for t in tiles if t[0] == 'X']:
        if nv < 48:
            accmap[tl] = ('v', 64 + 4 * nv); nv += 1
        else:
            accmap[tl] = ('a', 4 * na); na += 1
    def acc(g, t0, q):
        k, b = accmap[(g, t0, q)]; return '%s[%d:%d]' % (k, b, b + 3)
    ARING = 96
    BF = 112
    def bfrag(par, q): return ar(BF + 20 * par + 4 * q)
    def aslot(i): return ar(ARING + 4 * (i % 4))
    def a_loads(c, i):
        va = (vWX + i // 2) if i < 8 else (vWY + (i - 8) // 2)
        r = ARING + 4 * (i % 4); o = (c % 4) * WSLOT + 8 * (i % 2)
        return ['ds_read_b64_tr_b16 %s, v%d offset:%d' % (ar(r, 2), va, o), 'ds_read_b64_tr_b16 %s, v%d offset:%d' % (ar(r + 2, 2), va, o + 2048)]
    def b_loads(c):
        par = c % 2; o = ((c // 2) % 2) * XSLOT
        L = ['ds_read_b128 %s, v%d offset:%d' % (bfrag(par, q), vXA + par, o + q * 2048) for q in range(4)]
        L.append('ds_read_b128 %s, v%d offset:%d' % (bfrag(par, 4), vXS + par, o))
        return L
    import k1b
    k1b.early_setup(P)
    if P.opt.get('late', '0') == '1':
        emit_groups(wodma(0, 'q1'))
        emit_groups(wdma(1, 'q1'))
        emit_groups(xdma(1, 'q2'))
        emit_groups(wdma(2, 'q2'))
        emit_groups(wdma(3, 'q3'))
    P.waitvm(['q0'])
    e('s_barrier')
    for x in b_loads(0): e(x)
    for i in range(4):
        for x in a_loads(0, i): e(x)
    P.stamp(1)

    seq = [(i, q) for i in range(16) for q in range(5 if i < 8 else 4)]
    NQ = len(seq)
    first = {}; lastuse = {}
    for g, (i, q) in enumerate(seq):
        first.setdefault(i, g); lastuse[i] = g
    GBQ = 58
    def emit_qchunk(c, dma_groups, need_tag, last=False, post=None, extra=None):
        par = c % 2
        cap = [2] * NQ
        fill = [[] for _ in range(NQ)]
        for i in range(0, 16, 2):
            if first[i] > 0: cap[first[i] - 1] -= 1
        def place(g, items):
            for x in items:
                while cap[g] <= 0: g += 1
                fill[g].append(x); cap[g] -= 1
            return g
        for i in range(4, 16):
            place(lastuse[i - 4], a_loads(c, i))
        assert lastuse[11] < GBQ
        cap[GBQ] -= 2; fill[GBQ].append(('BAR',))
        if not last:
            g = place(GBQ + 1, b_loads(c + 1))
            for i in range(4):
                place(max(lastuse[12 + i], GBQ + 1), a_loads(c + 1, i))
        if post: place(GBQ + 1, post)
        if extra:
            for (g0, items) in extra: place(g0, items)
        g = 1
        for grp in dma_groups:
            for x in grp:
                while cap[min(g, NQ - 1)] <= 0 and g < NQ - 1: g += 1
                g = min(g, NQ - 1)
                fill[g].append(x); cap[g] -= 1
            g += int(P.opt.get('qsp', 3))
        for g, (i, q) in enumerate(seq):
            grp = 'X' if i < 8 else 'Y'
            a = acc(grp, i % 8, q)
            x = aslot(i + 1) if (i % 2 == 0 and g == first[i]) else None
            e('v_mfma_f32_16x16x32_bf16 %s, %s, %s, %s' % (a, aslot(i), bfrag(par, q), a if c != 0 else '0'), xrd=x)
            for x in fill[g]:
                if isinstance(x, tuple) and x[0] == 'BAR':
                    P.acc_begin()
                    P.waitvm([need_tag] if isinstance(need_tag, str) else need_tag)
                    e('s_waitcnt lgkmcnt(0)')
                    e('s_barrier')
                    P.acc_end(0)
                elif isinstance(x, tuple): e(x[0], tag=x[1])
                else: e(x)
    P.abl = P.opt.get('qabl', '').split(',')
    P.block('k1_q0')
    emit_qchunk(0, [], 'q1', post=wo_reads(0))
    e('s_mov_b32 s%d, 4' % sCNT)
    if P.opt.get('qst') == '1': P.stamp(8)
    P.block('k1_qloop')
    e('K1_QLOOP:')
    for cc in range(1, 5):
        G = wdma((cc + 3) % 4, 'q%d' % ((cc + 3) % 4))
        if cc % 2 == 0:
            GX = xdma((cc // 2 + 1) % 2, 'q%d' % ((cc + 2) % 4))
            G = GX + G
        pf = int(P.opt.get('pf', 0))
        tl = []
        for k in range(pf):
            tl.append([('buffer_load_dword v50, v49, %s, s53 offen %s' % (srd(S_K), P.opt.get('pfpol', 'nt')), 'pf')])
            tl.append([('buffer_load_dword v51, v49, %s, s53 offen %s' % (srd(S_V), P.opt.get('pfpol', 'nt')), 'pf'), 's_add_u32 s53, s53, 16384'])
        for k, g in enumerate(tl):
            if k * 4 // len(tl) == cc - 1: G = G + [g]
        emit_qchunk(cc, G, 'q%d' % ((cc + 1) % 4))
    e('s_sub_u32 s%d, s%d, 1' % (sCNT, sCNT))
    e('s_cmp_lg_u32 s%d, 0' % sCNT)
    e('s_cbranch_scc1 K1_QLOOP')
    P.abl = ()
    P.block('k1_qtail')
    if P.opt.get('qst') == '1': P.stamp(9)
    if P.opt.get('qst') == '2': P.stamp(11)
    tv = P.opt.get('tailv', '0')
    if tv == '0':
        emit_qchunk(17, wodma(1, 'wo1') + kdma(0, 'p0'), 'q2')
        if P.opt.get('qst') == '2': P.stamp(8)
        emit_qchunk(18, vdma(0, 'p0') + kdma(1, 'p1') + vdma(1, 'p1'), 'q3')
        if P.opt.get('qst') == '2': P.stamp(9)
        G19 = []
    else:
        emit_qchunk(17, wodma(1, 'wo1') + kdma(0, 'p0'), 'q2')
        emit_qchunk(18, vdma(0, 'p0') + kdma(1, 'p1'), 'q3')
        G19 = vdma(1, 'p1')
    if int(P.opt.get('kahead', 3)) == 3: G19 = G19 + kdma(2, 'p2')
    emit_qchunk(19, G19, 'wo1', last=True, post=wo_reads(1))
    if P.opt.get('qst') == '2': P.stamp(10)
    for x in wo_stores():
        if isinstance(x, tuple): e(x[0], tag=x[1])
        else: e(x)
    if P.opt.get('qst') != '2':
        e('s_mov_b32 s%d, s86' % S_WO)
        e('s_mov_b32 s%d, s87' % (S_WO + 1))
    e('s_mov_b32 s%d, 256' % (S_WO + 2))
    if P.opt.get('fused', '1') == '1' and P.opt.get('sync') != 'all':
        e('s_cmp_lg_u32 s%d, 0' % sW)
        e('s_cbranch_scc1 K1_NOX')
        e('s_getreg_b32 s%d, hwreg(HW_REG_XCC_ID)' % sT0)
        e('s_and_b32 s%d, s%d, 15' % (sT0, sT0))
        e('s_lshl_b32 s%d, 1, s%d' % (sT0, sT0))
        e('s_lshl_b32 s%d, s%d, 3' % (sT1, sP))
        e('s_add_u32 s%d, s%d, s%d' % (sT1, sT1, sB))
        e('s_lshl_b32 s%d, s%d, 3' % (sT1, sT1))
        e('s_add_u32 s%d, s%d, 128' % (sT1, sT1))
        e('v_mov_b32 v60, s%d' % sT1)
        e('v_mov_b32 v61, s%d' % sT0)
        e('v_mov_b32 v62, 1')
        e('v_cmp_eq_u32 vcc, 0, v2')
        e('s_and_saveexec_b64 s[62:63], vcc')
        e('buffer_atomic_or v61, v60, %s, 0 offen sc1' % srd(S_WO))
        e('buffer_atomic_add v62, v60, %s, 0 offen offset:4 sc1' % srd(S_WO))
        e('s_mov_b64 exec, s[62:63]')
        e('K1_NOX:')
    P.stamp(2)
    return dict(accmap=accmap)
```

```python
from asmlib import *
from k1 import *
from k1b import *

def gen_emit(P, info, T):
    e = P.e
    fused = P.opt.get('fused', '1') == '1'
    spol = ' sc1' if fused else (' ' + P.opt.get('ostp', ''))
    slots, GB = T['slots'], T['GB']
    def valid(blk): return 0 <= blk[1] <= 15
    def emit_item_groups(g):
        for x in g:
            if isinstance(x, tuple): e(x[0], tag=x[1])
            else: e(x)
    def emit_range(G0, G1, zero_first=False, rawS0=False, skipv=None, skip_dma=False, skip_bar=False):
        for GG in range(G0, G1):
            s = slots[GG]; m = s['m']
            if valid(m['blk']):
                C = m['C']
                if zero_first and m['blk'] == ('F', 0) and m['ph'] == 4: C = '0'
                if rawS0 and m['ph'] == 1 and m['blk'] == ('F', 0) and m.get('ds') == 0: C = '0'
                e('v_mfma_f32_16x16x32_bf16 %s, %s, %s, %s' % (m['D'], m['A'], m['B'], C))
            for (t, blk) in s['l']:
                if valid(blk): e(t)
            for it in s['s']:
                if it[0] == 'BAR':
                    if skip_bar: continue
                    P.acc_begin()
                    P.waitvm(['p%d' % (it[1] % 4)])
                    e('s_barrier')
                    P.acc_end(1)
                    if P.opt.get('ist'):
                        e('s_memtime s[90:91]'); e('s_waitcnt lgkmcnt(0)')
                        e('s_mov_b32 s91, m0'); e('s_mov_b32 m0, s101'); e('v_writelane_b32 v1, s90, m0'); e('s_mov_b32 m0, s91'); e('s_add_u32 s101, s101, 1')
                elif it[0] == 'DMA':
                    if not skip_dma: emit_item_groups(it[1])
            for (t, blk) in s['v']:
                if valid(blk) and not (skipv and skipv(GG, t, blk)): e(t)
    P.cur = P.blocks['k1_asetup']
    c0 = []
    for GG in range(-NG + GB, GB):
        for it in slots[GG]['s']:
            if it[0] == 'DMA' and it[2] == 0: c0.append((GG, it[1]))
    assert len(c0) == 8, c0
    def emit_c0_early():
        for GG, g in c0:
            if GG < 0: emit_item_groups(g)
    emit_c0_early()

    P.stamp(3)
    P.block('k1_A')
    e('K1_A:')
    for GG in range(-NG + GB, 0):
        for (t, blk) in slots[GG]['l']:
            if blk == ('F', 0): e(t)
    deferred = []
    def skipv(GG, t, blk):
        if blk == ('F', 0) and GG < 40:
            deferred.append(t); return True
        return False
    emit_range(0, 40, rawS0=True, skipv=skipv)
    e('s_cmp_eq_u32 s%d, 1' % sGIVEN)
    e('s_cbranch_scc1 K1_AGIVEN')
    P.block('k1_Amax')
    R = range(5)
    def S(qt, i): return vSF + 8 * qt + i
    def N(qt, i): return vNM + 4 * qt + i
    for qt in R: e('v_max3_f32 v%d, v%d, v%d, v%d' % (N(qt, 0), S(qt, 0), S(qt, 1), S(qt, 2)))
    for qt in R: e('v_max3_f32 v%d, v%d, v%d, v%d' % (N(qt, 1), S(qt, 3), S(qt, 4), S(qt, 5)))
    for qt in R: e('v_max3_f32 v%d, v%d, v%d, v%d' % (N(qt, 0), N(qt, 0), S(qt, 6), S(qt, 7)))
    for qt in R: e('v_max_f32 v%d, v%d, v%d' % (N(qt, 0), N(qt, 0), N(qt, 1)))
    def xreduce_max():
        for sw in ('v_permlane32_swap_b32', 'v_permlane16_swap_b32'):
            for qt in R: e('v_mov_b32 v%d, v%d' % (N(qt, 1), N(qt, 0)))
            for qt in R: e('%s v%d, v%d' % (sw, N(qt, 0), N(qt, 1)))
            for qt in R: e('v_max_f32 v%d, v%d, v%d' % (N(qt, 0), N(qt, 0), N(qt, 1)))
        for qt in R: e('v_sub_f32 v%d, 0, v%d' % (N(qt, 0), N(qt, 0)))
        for i in range(1, 4):
            for qt in R: e('v_mov_b32 v%d, v%d' % (N(qt, i), N(qt, 0)))
    xreduce_max()
    P.block('k1_A2')
    e('K1_AGIVEN:')
    for i in range(8):
        for qt in R: e('v_add_f32 v%d, v%d, v%d' % (S(qt, i), N(qt, 0), S(qt, i)))
    for t in deferred: e(t)
    emit_range(40, GB, zero_first=True)
    P.block('k1_B')
    P.stamp(4)
    emit_range(GB, NG + GB, zero_first=True)
    e('s_mov_b32 s%d, 4' % sCNT)
    def text_of(G0, G1):
        save = P.cur; tmp = []; P.cur = tmp
        emit_range(G0, G1); P.cur = save
        return [i.text for i in tmp]
    for p in range(2, 12):
        assert text_of((p - 1) * NG + GB, p * NG + GB) == text_of((p + 3) * NG + GB, (p + 4) * NG + GB), p
    P.abl = P.opt.get('aabl', '').split(',')
    P.block('k1_L1')
    e('K1_L1:')
    emit_range(1 * NG + GB, 3 * NG + GB)
    e('s_sub_u32 s%d, s%d, 1' % (sCNT, sCNT))
    e('s_cmp_eq_u32 s%d, 0' % sCNT)
    e('s_cbranch_scc1 K1_T')
    P.block('k1_L2')
    emit_range(3 * NG + GB, 5 * NG + GB)
    e('s_branch K1_L1')
    P.abl = ()
    P.block('k1_T')
    e('K1_T:')
    P.stamp(5)
    emit_range(15 * NG + GB, 16 * NG)
    emit_range(16 * NG, 16 * NG + 76, skip_dma=True)
    assert all(GG < GB for GG, _ in c0)

    PK = vSF
    P.block('k1_E')
    P.stamp(6)
    e('s_mov_b64 s[62:63], 0')
    for qt in R:
        e('v_cmp_nlt_f32 vcc, v%d, v%d' % (vL + 4 * qt, 60)) if False else None
    e('v_mov_b32 v60, s%d' % sBIG)
    for qt in R:
        e('v_cmp_nlt_f32 vcc, v%d, v60' % (vL + 4 * qt))
        e('s_or_b64 s[62:63], s[62:63], vcc')
    e('s_cmp_lg_u64 s[62:63], 0')
    e('s_cselect_b32 s%d, 1, 0' % sT0)
    e('v_mov_b32 v61, s%d' % sT0)
    e('s_lshl_b32 s%d, s%d, 2' % (sT1, sW))
    e('s_add_u32 s%d, s%d, %d' % (sT1, sT1, XA + 16384))
    e('v_mov_b32 v62, s%d' % sT1)
    e('ds_write_b32 v62, v61')
    e('v_mov_b32 v60, v%d' % (vNM + 16))
    e('v_mov_b32 v61, v%d' % (vL + 16))
    e('s_lshl_b32 s%d, s%d, 9' % (sT1, sW))
    e('s_add_u32 s%d, s%d, %d' % (sT1, sT1, XA + 16384 + 256))
    e('v_lshlrev_b32 v62, 3, v2')
    e('v_add_u32 v62, s%d, v62' % sT1)
    e('ds_write_b64 v62, v[60:61]')
    e('s_xor_b32 s%d, s%d, 512' % (sT1, sT1))
    e('v_lshlrev_b32 v63, 3, v2')
    e('v_add_u32 v63, s%d, v63' % sT1)
    e('s_lshl_b32 s%d, s%d, 12' % (sT1, sW))
    e('s_add_u32 s%d, s%d, %d' % (sT1, sT1, XA))
    e('v_add_u32 v32, s%d, v7' % sT1)
    e('s_xor_b32 s%d, s%d, 4096' % (sT1, sT1))
    e('v_add_u32 v33, s%d, v7' % sT1)
    if fused and P.opt.get('sync') != 'all':
        e('s_lshl_b32 s%d, s%d, 3' % (sT1, sP))
        e('s_add_u32 s%d, s%d, s%d' % (sT1, sT1, sB))
        e('s_lshl_b32 s%d, s%d, 3' % (sT1, sT1))
        e('s_add_u32 s%d, s%d, 128' % (sT1, sT1))
        e('s_load_dwordx2 s[92:93], s[28:29], s%d' % sT1)
    e('s_cmp_eq_u32 s%d, 1' % sPAR)
    e('s_cbranch_scc1 K1_E1')
    names = []
    for par in range(2):
        P.block('k1_E%d' % par)
        if par: e('K1_E1:')
        keep = range(4 * par, 4 * par + 4); send = range(4 * (1 - par), 4 * (1 - par) + 4)
        for i, dt in enumerate(send):
            e('ds_write_b128 v32, %s offset:%d' % (O(4, dt), i * 1024))
        for qt in range(4):
            e('v_rcp_f32 v%d, v%d' % (vNM + 4 * qt + 2, vL + 4 * qt))
        tb = 0
        for qt in range(4):
            rr = vNM + 4 * qt + 2
            for u in range(4):
                t = vVR + 8 * (tb % 2); d = PK + 4 * (4 * qt + u); tb += 1
                for i in range(8):
                    e('v_accvgpr_read_b32 v%d, a%d' % (t + i, aO + 32 * qt + 8 * u + i))
                for i in range(0, 8, 2):
                    e('v_pk_mul_f32 v[%d:%d], v[%d:%d], v[%d:%d] op_sel_hi:[1,0]' % (t + i, t + i + 1, t + i, t + i + 1, rr, rr + 1))
                for i in range(4):
                    e('v_cvt_pk_bf16_f32 v%d, v%d, v%d' % (d + i, t + 2 * i, t + 2 * i + 1))
        if fused: P.waitvm(['wfst'])
        e('s_waitcnt lgkmcnt(0)')
        e('s_barrier')
        if fused and P.opt.get('sync') != 'all':
            e('s_lshl_b32 s%d, s%d, 2' % (sT0, sHEAD))
            e('s_add_u32 s%d, s%d, s%d' % (sT0, sT0, sW))
            e('s_add_u32 s%d, s%d, s%d' % (sT0, sT0, sGIVEN))
            e('s_cmp_lg_u32 s%d, 0' % sT0)
            e('s_cbranch_scc1 K1_NOW%d' % par)
            e('s_lshr_b32 s%d, s2, 7' % sT0)
            e('s_lshl_b32 s%d, s%d, 2' % (sT0, sT0))
            e('s_add_u32 s%d, s%d, 64' % (sT0, sT0))
            e('v_mov_b32 v60, s%d' % sT0)
            e('v_mov_b32 v61, 1')
            e('v_cmp_eq_u32 vcc, 0, v2')
            e('s_and_saveexec_b64 s[62:63], vcc')
            e('buffer_atomic_add v61, v60, %s, 0 offen sc1' % srd(S_WO))
            e('s_mov_b64 exec, s[62:63]')
            e('K1_NOW%d:' % par)
        pb = vL
        for i in range(4):
            e('ds_read_b128 %s, v33 offset:%d' % (vr(pb + 4 * i), i * 1024))
        e('ds_read_b64 v[60:61], v63')
        e('v_mov_b32 v62, %d' % (XA + 16384))
        e('ds_read_b128 %s, v62' % vr(vVR))
        e('v_or_b32 v%d, v%d, v%d' % (vVR, vVR, vVR + 1))
        e('v_or_b32 v%d, v%d, v%d' % (vVR + 2, vVR + 2, vVR + 3))
        e('v_or_b32 v%d, v%d, v%d' % (vVR, vVR, vVR + 2))
        e('v_readfirstlane_b32 s%d, v%d' % (sT0, vVR))
        e('s_andn2_b32 s%d, s%d, s%d' % (sT0, sT0, sGIVEN))
        e('s_cmp_lg_u32 s%d, 0' % sT0)
        e('s_cbranch_scc1 K1_FB')
        P.block('k1_F%d' % par)
        nmo = vNM + 16; lo = vL + 16
        e('v_min_f32 v62, v60, v%d' % nmo)
        e('v_sub_f32 v63, v62, v%d' % nmo)
        e('v_sub_f32 v62, v62, v60')
        e('v_exp_f32 v63, v63')
        e('v_exp_f32 v62, v62')
        e('v_mul_f32 v61, v61, v62')
        e('v_fma_f32 v61, v%d, v63, v61' % lo)
        e('v_rcp_f32 v61, v61')
        e('v_mul_f32 v63, v63, v61')
        e('v_mul_f32 v62, v62, v61')
        for uu in range(2):
            t = vVR + 8 * uu; d = PK + 64 + 4 * uu
            for i in range(8):
                e('v_accvgpr_read_b32 v%d, a%d' % (t + i, aO + 128 + 4 * keep[0] + 8 * uu + i))
            for i in range(8):
                e('v_mul_f32 v%d, v63, v%d' % (t + i, t + i))
            for i in range(8):
                e('v_fma_f32 v%d, v%d, v62, v%d' % (t + i, pb + 8 * uu + i, t + i))
            for i in range(4):
                e('v_cvt_pk_bf16_f32 v%d, v%d, v%d' % (d + i, t + 2 * i, t + 2 * i + 1))
        if par == 0: e('s_branch K1_N')
    P.block('k1_N')
    e('K1_N:')
    P.stamp(7)
    e('s_cmp_eq_u32 s%d, 1' % sHEAD)
    e('s_cbranch_scc1 K1_ST')
    P.block('k1_N2')
    e('s_mov_b32 s%d, 1' % sHEAD)
    if getattr(P, 'prof', False) and not P.opt.get('qst'):
        for i in range(4):
            e('s_mov_b64 s[%d:%d], s[%d:%d]' % (64 + 2 * (8 + i), 65 + 2 * (8 + i), 64 + 2 * (4 + i), 65 + 2 * (4 + i)))
    e('s_mov_b32 s%d, 0' % sGIVEN)
    e('s_add_u32 s%d, s%d, %d' % (sOFB, sOFB, 4 * 9216))
    for i in range(80):
        e('v_accvgpr_read_b32 v%d, a%d' % (vQ + i, aQN + i))
    for i in range(72):
        e('v_accvgpr_write_b32 a%d, v%d' % (aQN + i, PK + i))
    e('s_branch K1_A')
    P.block('k1_ST')
    e('K1_ST:')
    e('s_mul_i32 s%d, s%d, %d' % (sT3, sPAR, 2 * 9216))
    e('s_add_u32 s%d, s%d, s%d' % (sT3, sT3, sOT + 4))
    def final_stores(pol):
        for hd in (1, 0):
            if hd == 0: e('s_sub_u32 s%d, s%d, %d' % (sOFB, sOFB, 4 * 9216))
            for qt in range(5):
                e('s_add_u32 s%d, s%d, s%d' % (sT1, (sOT + qt) if qt < 4 else sT3, sOFB))
                for u in range(4 if qt < 4 else 2):
                    k = 4 * qt + u
                    src = vr(PK + 4 * k) if hd == 1 else ar(aQN + 4 * k)
                    if u: e('s_add_u32 s%d, s%d, 9216' % (sT1, sT1))
                    e('buffer_store_dwordx4 %s, v7, %s, s%d offen%s' % (src, srd(S_WS), sT1, pol), tag='ost')
    if fused and P.opt.get('sync') == 'all':
        final_stores(' sc1')
    elif fused:
        e('s_bcnt1_i32_b32 s%d, s92' % sT0)
        e('s_cmp_eq_u32 s%d, 1' % sT0)
        e('s_cselect_b32 s%d, 1, 0' % sT0)
        e('s_cmp_eq_u32 s93, 16')
        e('s_cselect_b32 s%d, 1, 0' % sT1)
        e('s_and_b32 s%d, s%d, s%d' % (sT0, sT0, sT1))
        if P.opt.get('forceslow'): e('s_mov_b32 s%d, 0' % sT0)
        e('s_cmp_eq_u32 s%d, 1' % sT0)
        e('s_cbranch_scc0 K1_STS')
        final_stores('')
        e('s_branch K1_FIN')
        P.block('k1_STS')
        e('K1_STS:')
        final_stores(' sc1')
    else:
        final_stores(spol)
    e('s_branch K1_FIN')

    P.block('k1_FB')
    e('K1_FB:')
    e('s_waitcnt vmcnt(0) lgkmcnt(0)')
    e('s_barrier')
    e('v_lshlrev_b32 v60, 8, v3')
    e('v_lshlrev_b32 v61, 4, v4')
    e('v_add_u32 v60, v60, v61')
    e('s_lshl_b32 s%d, s%d, 18' % (sT0, sHEAD))
    e('s_mov_b32 s%d, 64' % sCNT)
    for qt in R: e('v_mov_b32 v%d, 0xff800000' % N(qt, 0))
    P.block('k1_FBL')
    e('K1_FBL:')
    for ds in range(4):
        e('buffer_load_dwordx4 %s, v60, %s, s%d offen offset:%d' % (vr(vVR + 4 * ds), srd(S_K), sT0, ds * 64))
    for ds in range(4):
        for qt in R:
            D = vr(vSF + 8 * qt)
            e('v_mfma_f32_16x16x32_bf16 %s, %s, %s, %s' % (D, vr(vVR + 4 * ds), Qf(qt, ds), D if ds else '0'))
    for qt in R:
        e('v_max3_f32 v%d, v%d, v%d, v%d' % (N(qt, 0), N(qt, 0), S(qt, 0), S(qt, 1)))
    for qt in R:
        e('v_max3_f32 v%d, v%d, v%d, v%d' % (N(qt, 0), N(qt, 0), S(qt, 2), S(qt, 3)))
    e('s_add_u32 s%d, s%d, 4096' % (sT0, sT0))
    e('s_sub_u32 s%d, s%d, 1' % (sCNT, sCNT))
    e('s_cmp_lg_u32 s%d, 0' % sCNT)
    e('s_cbranch_scc1 K1_FBL')
    P.block('k1_FB2')
    xreduce_max()
    e('s_mov_b32 s%d, 1' % sGIVEN)
    e('s_lshl_b32 s%d, s%d, 18' % (sKO, sHEAD))
    e('s_lshl_b32 s%d, s%d, 18' % (sVO, sHEAD))
    for G in (kdma(0, 'p0'), vdma(0, 'p0'), kdma(1, 'p1'), vdma(1, 'p1')) + ((kdma(2, 'p2'),) if int(P.opt.get('kahead', 3)) == 3 else ()):
        for g in G: emit_item_groups(g)
    emit_c0_early()
    P.waitvm(['p0'])
    e('s_barrier')
    e('s_branch K1_A')
    P.block('k1_end')
    e('K1_FIN:')
    if fused:
        e('s_waitcnt vmcnt(0)')
        e('s_barrier')
        e('s_cmp_lg_u32 s%d, 0' % sW)
        e('s_cbranch_scc1 K1_NOC')
        e('s_lshl_b32 s%d, s%d, 3' % (sT0, sP))
        e('s_add_u32 s%d, s%d, s%d' % (sT0, sT0, sB))
        e('s_lshl_b32 s%d, s%d, 2' % (sT0, sT0))
        if P.opt.get('sync') == 'all': e('s_mov_b32 s%d, 0' % sT0)
        e('v_mov_b32 v60, s%d' % sT0)
        e('v_mov_b32 v61, 1')
        e('v_cmp_eq_u32 vcc, 0, v2')
        e('s_and_saveexec_b64 s[62:63], vcc')
        e('buffer_atomic_add v61, v60, %s, 0 offen sc1' % srd(S_WO))
        e('s_mov_b64 exec, s[62:63]')
        e('K1_NOC:')
    if getattr(P, 'prof', False):
        e('s_memrealtime s[98:99]')
        e('s_waitcnt lgkmcnt(0)')
        for i in range(16):
            src = (64 + 2 * i) if i < 12 else {12: 96, 13: 98, 14: 100, 15: 101}[i]
            e('v_mov_b32 v%d, s%d' % (64 + i, src))
        e('s_lshl_b32 s37, s2, 2')
        e('s_add_u32 s37, s37, s%d' % sW)
        if P.opt.get('ist'):
            e('s_lshl_b32 s38, s37, 8')
            e('v_lshlrev_b32 v61, 2, v2')
            e('v_add_u32 v61, s38, v61')
            e('s_add_u32 s8, s61, 0x4200000')
            e('s_addc_u32 s9, s55, 0')
            e('s_mov_b32 s10, 0x100000')
            e('s_mov_b32 s11, 0x00020000')
            e('buffer_store_dword v1, v61, s[8:11], 0 offen')
        e('s_lshl_b32 s37, s37, 6')
        e('v_mov_b32 v60, s37')
        e('s_add_u32 s8, s61, 0x4000000')
        e('s_addc_u32 s9, s55, 0')
        e('s_mov_b32 s10, 0x100000')
        e('s_mov_b32 s11, 0x00020000')
        e('v_cmp_eq_u32 vcc, 0, v2')
        e('s_and_saveexec_b64 s[62:63], vcc')
        e('s_cbranch_execz %s' % ('K1_PRE2' if fused else 'K1_DONE'))
        for i in range(4):
            e('buffer_store_dwordx4 v[%d:%d], v60, s[8:11], 0 offen offset:%d' % (64 + 4 * i, 67 + 4 * i, 16 * i))
    if fused:
        e('K1_PRE2:')
        e('s_mov_b64 exec, -1')
        e('s_branch K2_START')
    e('K1_DONE:')
    e('s_endpgm')

    pre = ['k1_pre', 'k1_q0', 'k1_qloop', 'k1_qloop', 'k1_qtail', 'k1_fx']
    paths = []
    for par in range(2):
        head = ['k1_A', 'k1_Amax', 'k1_A2', 'k1_B', 'k1_L1', 'k1_L2', 'k1_L1', 'k1_L2', 'k1_L1', 'k1_T', 'k1_E', 'k1_E%d' % par]
        paths.append(pre + ['k1_fx%d' % par, 'k1_asetup'] + head + ['k1_F%d' % par, 'k1_N', 'k1_N2'] + head + ['k1_F%d' % par, 'k1_N', 'k1_ST'] + (['k1_STS'] if (fused and P.opt.get('sync') != 'all') else []))
        paths.append(pre + ['k1_fx%d' % par, 'k1_asetup'] + head + ['k1_FB', 'k1_FBL', 'k1_FBL', 'k1_FB2', 'k1_A', 'k1_A2', 'k1_B', 'k1_L1', 'k1_T'])
    return paths
```

```python
from asmlib import *

WF_OFF = 0x2400000

def gen_k2(P, name='oproj_kernel', fused=False):
    P.block('k2_pre')
    e = P.e
    pol = 'sc1' if fused else P.opt.get('k2pol', '')
    if not fused:
        e('.p2align 8')
        e('.globl %s' % name)
        e('.type %s,@function' % name)
        e('%s:' % name)
        e('s_cmp_ge_u32 s2, 256')
        e('s_cbranch_scc1 K2_DONE')
    e('K2_START:')
    e('s_load_dwordx2 s[36:37], s[0:1], 88')
    e('s_load_dwordx2 s[4:5], s[0:1], 96')
    e('s_load_dwordx2 s[6:7], s[0:1], 80')
    e('v_lshrrev_b32 v1, 6, v0')
    e('v_and_b32 v2, 63, v0')
    e('v_readfirstlane_b32 s20, v1')
    e('v_lshlrev_b32 v3, 4, v2')
    e('s_and_b32 s21, s2, 7')
    e('s_lshr_b32 s22, s2, 3')
    e('s_lshr_b32 s23, s21, 2')
    if P.opt.get('map', 'local') == 'local':
        e('s_and_b32 s24, s21, 3')
        e('s_lshl_b32 s24, s24, 1')
        e('s_lshr_b32 s25, s22, 4')
        e('s_add_u32 s24, s24, s25')
        e('s_lshl_b32 s38, s23, 3')
        e('s_add_u32 s38, s38, s24')
        e('s_lshl_b32 s24, s24, 1')
        e('s_lshr_b32 s25, s22, 3')
        e('s_and_b32 s25, s25, 1')
        e('s_add_u32 s24, s24, s25')
        e('s_and_b32 s25, s22, 7')
    else:
        e('s_and_b32 s24, s21, 2')
        e('s_lshl_b32 s24, s24, 1')
        e('s_and_b32 s25, s22, 3')
        e('s_add_u32 s24, s24, s25')
        e('s_lshl_b32 s38, s23, 3')
        e('s_add_u32 s38, s38, s24')
        e('s_lshl_b32 s24, s24, 1')
        e('s_and_b32 s25, s21, 1')
        e('s_add_u32 s24, s24, s25')
        e('s_lshr_b32 s25, s22, 2')
    e('s_waitcnt lgkmcnt(0)')
    e('s_lshl_b32 s26, s23, 4')
    e('s_add_u32 s26, s26, s24')
    e('s_mul_i32 s26, s26, %d' % (128 * 9216))
    e('s_add_u32 s8, s4, s26')
    e('s_addc_u32 s9, s5, 0')
    e('s_mov_b32 s10, %d' % (128 * 9216))
    e('s_mov_b32 s11, 0x00020000')
    e('s_lshl_b32 s26, s23, 3')
    e('s_add_u32 s26, s26, s25')
    e('s_mul_i32 s26, s26, %d' % (128 * 5120))
    e('s_add_u32 s26, s26, %d' % WF_OFF)
    e('s_add_u32 s12, s4, s26')
    e('s_addc_u32 s13, s5, 0')
    e('s_mov_b32 s14, %d' % (128 * 5120))
    e('s_mov_b32 s15, 0x00020000')
    e('s_mov_b32 s16, s6')
    e('s_mov_b32 s17, s7')
    e('s_mov_b32 s18, %d' % (8 * 288 * 1280 * 2))
    e('s_mov_b32 s19, 0x00020000')
    if getattr(P,'prof',False): e('s_memtime s[52:53]'); e('s_memrealtime s[48:49]'); e('s_waitcnt lgkmcnt(0)')
    if fused:
        e('s_mov_b32 s40, s36')
        e('s_mov_b32 s41, s37')
        e('s_mov_b32 s42, 256')
        e('s_mov_b32 s43, 0x00020000')
        e('s_lshl_b32 s38, s38, 2')
        e('s_lshl_b32 s39, s23, 2')
        e('s_add_u32 s39, s39, 64')
        e('v_mov_b32 v10, s38')
        e('v_mov_b32 v11, s39')
        e('s_mov_b32 s39, 0x10000')
        e('s_cmp_lg_u32 s20, 0')
        e('s_cbranch_scc1 K2_GO')
        e('K2_POLL:')
        if P.opt.get('sync') == 'all':
            e('v_mov_b32 v10, 0')
            e('buffer_load_dword v12, v10, s[40:43], 0 offen sc1')
            e('s_waitcnt vmcnt(0)')
            e('v_readfirstlane_b32 s37, v12')
            e('s_cmp_eq_u32 s37, 256')
            e('s_cbranch_scc1 K2_GO')
        else:
            e('buffer_load_dword v12, v10, s[40:43], 0 offen sc1')
            e('buffer_load_dword v13, v11, s[40:43], 0 offen sc1')
            e('s_waitcnt vmcnt(0)')
            e('v_readfirstlane_b32 s37, v12')
            e('v_readfirstlane_b32 s38, v13')
            e('s_cmp_eq_u32 s37, 16')
            e('s_cselect_b32 s37, 1, 0')
            e('s_cmp_eq_u32 s38, 128')
            e('s_cselect_b32 s38, 1, 0')
            e('s_and_b32 s37, s37, s38')
            e('s_cmp_eq_u32 s37, 1')
            e('s_cbranch_scc1 K2_GO')
        e('s_sub_u32 s39, s39, 1')
        e('s_cmp_eq_u32 s39, 0')
        e('s_cbranch_scc1 K2_GO')
        e('s_sleep %s' % P.opt.get('sleep', '16'))
        e('s_branch K2_POLL')
        e('K2_GO:')
        e('s_barrier')
    kq = P.opt.get('k2q') == '1'
    e('s_mul_i32 s30, s20, %d' % (9216 * (32 if kq else 1)))
    e('s_mul_i32 s31, s20, %d' % (5120 * (32 if kq else 1)))
    ACC = 64
    def acc(t, qt):
        r = ACC + 4 * (t * 9 + qt); return 'v[%d:%d]' % (r, r + 3)
    def fA(st, t):
        r = st * 56 + 4 * t; return 'a[%d:%d]' % (r, r + 3)
    def fB(st, qt):
        r = st * 56 + 20 + 4 * qt; return 'a[%d:%d]' % (r, r + 3)
    def loads(st):
        L = []
        L.append(['buffer_load_dwordx4 %s, v3, s[12:15], s31 offen %s' % (fA(st, 0), pol)])
        L.append(['s_add_u32 s32, s30, 4096', 's_add_u32 s33, s30, 8192', 'buffer_load_dwordx4 %s, v3, s[8:11], s30 offen %s' % (fB(st, 0), pol)])
        for qt in range(1, 4):
            L.append(['buffer_load_dwordx4 %s, v3, s[8:11], s30 offen offset:%d %s' % (fB(st, qt), qt * 1024, pol)])
        for qt in range(4, 8):
            L.append(['buffer_load_dwordx4 %s, v3, s[8:11], s32 offen offset:%d %s' % (fB(st, qt), (qt - 4) * 1024, pol)])
        L.append(['buffer_load_dwordx4 %s, v3, s[8:11], s33 offen %s' % (fB(st, 8), pol)])
        for t in range(1, 4):
            L.append(['buffer_load_dwordx4 %s, v3, s[12:15], s31 offen offset:%d %s' % (fA(st, t), t * 1024, pol)])
        L.append(['s_add_u32 s34, s31, 4096', 'buffer_load_dwordx4 %s, v3, s[12:15], s34 offen %s' % (fA(st, 4), pol),
                  's_add_u32 s30, s30, %d' % ((1 if kq else 4) * 9216), 's_add_u32 s31, s31, %d' % ((1 if kq else 4) * 5120)])
        return L
    for st in range(3):
        for grp in loads(st):
            for t in grp: e(t)
    for r in range(ACC, ACC + 180):
        e('v_mov_b32 v%d, 0' % r)
    e('s_mov_b32 s35, 8')
    if getattr(P,'prof',False): e('s_memtime s[54:55]'); e('s_waitcnt lgkmcnt(0)')
    P.block('k2_loop')
    e('K2_LOOP:')
    for st in range(4):
        L = loads((st + 3) % 4)
        g = 0; li = 0
        for t in range(5):
            for qt in range(9):
                e('v_mfma_f32_16x16x32_bf16 %s, %s, %s, %s' % (acc(t, qt), fA(st, t), fB(st, qt), acc(t, qt)))
                if g % 3 == 1 and li < len(L):
                    for x in L[li]: e(x)
                    li += 1
                g += 1
        assert li == len(L)
    e('s_sub_u32 s35, s35, 1')
    e('s_cmp_lg_u32 s35, 0')
    e('s_cbranch_scc1 K2_LOOP')
    P.block('k2_mid')
    if getattr(P,'prof',False): e('s_memtime s[56:57]'); e('s_waitcnt lgkmcnt(0)')
    e('s_waitcnt vmcnt(0)')
    units = {0: [('P', 0, q) for q in range(0, 5)] + [('S', 4, 0)],
             1: [('P', 0, q) for q in range(5, 9)] + [('P', 2, 0)] + [('S', 4, 1)],
             2: [('P', 2, q) for q in range(1, 5)] + [('S', 4, q) for q in (2, 3, 4)],
             3: [('P', 2, q) for q in range(5, 9)] + [('S', 4, q) for q in (5, 6, 7, 8)]}
    owner = {}
    for w, us in units.items():
        for (k, t, q) in us:
            owner[(t, q)] = w
            if k == 'P': owner[(t + 1, q)] = w
    assert len(owner) == 45
    e('v_and_b32 v4, 15, v2')
    e('v_lshrrev_b32 v5, 4, v2')
    e('s_mul_i32 s26, s24, 144')
    e('v_add_u32 v4, s26, v4')
    e('s_movk_i32 s27, 2560')
    e('v_mul_lo_u32 v4, v4, s27')
    e('s_mul_i32 s26, s23, 1280')
    e('s_mul_i32 s27, s25, 160')
    e('s_add_u32 s26, s26, s27')
    e('v_add_u32 v4, s26, v4')
    e('v_lshlrev_b32 v6, 4, v5')
    e('v_add_u32 v6, v4, v6')
    e('v_lshlrev_b32 v7, 3, v5')
    e('v_add_u32 v7, v4, v7')
    e('v_add_u32 v7, 128, v7')
    e('v_add_u32 v8, 0x10000, v3')
    e('v_add_u32 v9, 0x20000, v3')
    for w in range(1, 4):
        e('s_cmp_eq_u32 s20, %d' % w)
        e('s_cbranch_scc1 K2_W%d' % w)
    paths = []
    def ldsaddr(off):
        if off < 0x10000: return 'v3', off
        if off < 0x20000: return 'v8', off - 0x10000
        return 'v9', off - 0x20000
    for w in range(4):
        P.block('k2_w%d' % w)
        e('K2_W%d:' % w)
        for t in range(5):
            for qt in range(9):
                o = owner[(t, qt)]
                if o == w: continue
                idx = w if w < o else w - 1
                a, off = ldsaddr(((t * 9 + qt) * 3 + idx) * 1024)
                e('ds_write_b128 %s, %s offset:%d' % (a, acc(t, qt), off))
        e('s_waitcnt lgkmcnt(0)')
        e('s_barrier')
        tmp = 16
        slot = 0
        def sum_tile(t, qt):
            nonlocal slot
            base = tmp + 12 * (slot % 4); slot += 1
            for idx in range(3):
                a, off = ldsaddr(((t * 9 + qt) * 3 + idx) * 1024)
                e('ds_read_b128 v[%d:%d], %s offset:%d' % (base + 4 * idx, base + 4 * idx + 3, a, off))
            return base
        tiles = []
        for (k, t, q) in units[w]:
            tiles.append((k, t, q))
        pend = []
        def issue(u):
            k, t, q = u
            b0 = sum_tile(t, q)
            b1 = sum_tile(t + 1, q) if k == 'P' else None
            return (u, b0, b1)
        def finish(pu):
            (k, t, q), b0, b1 = pu
            for (tt, b) in ((t, b0), (t + 1, b1)):
                if b is None: continue
                r = ACC + 4 * (tt * 9 + q)
                for i in range(4):
                    e('v_add_f32 v%d, v%d, v%d' % (b + i, b + i, b + 4 + i))
                    e('v_add_f32 v%d, v%d, v%d' % (r + i, r + i, b + 8 + i))
                for i in range(4):
                    e('v_add_f32 v%d, v%d, v%d' % (r + i, r + i, b + i))
            r0 = ACC + 4 * (t * 9 + q)
            if k == 'P':
                r1 = ACC + 4 * ((t + 1) * 9 + q)
                e('v_cvt_pk_bf16_f32 v10, v%d, v%d' % (r0, r0 + 1))
                e('v_cvt_pk_bf16_f32 v11, v%d, v%d' % (r0 + 2, r0 + 3))
                e('v_cvt_pk_bf16_f32 v12, v%d, v%d' % (r1, r1 + 1))
                e('v_cvt_pk_bf16_f32 v13, v%d, v%d' % (r1 + 2, r1 + 3))
                e('s_mov_b32 s26, %d' % (q * 16 * 2560 + (t // 2) * 64))
                e('buffer_store_dwordx4 v[10:13], v6, s[16:19], s26 offen')
            else:
                e('v_cvt_pk_bf16_f32 v14, v%d, v%d' % (r0, r0 + 1))
                e('v_cvt_pk_bf16_f32 v15, v%d, v%d' % (r0 + 2, r0 + 3))
                e('s_mov_b32 s26, %d' % (q * 16 * 2560))
                e('buffer_store_dwordx2 v[14:15], v7, s[16:19], s26 offen')
        prev = None
        for u in tiles:
            cur = issue(u)
            if prev is not None: finish(prev)
            prev = cur
        finish(prev)
        if getattr(P,'prof',False):
            e('s_memtime s[58:59]'); e('s_memrealtime s[50:51]'); e('s_waitcnt lgkmcnt(0)')
            for i, sr in enumerate((52, 54, 56, 58, 48, 50)): e('v_mov_b32 v%d, s%d' % (16 + i, sr))
            e('s_lshl_b32 s37, s2, 2'); e('s_add_u32 s37, s37, s20'); e('s_lshl_b32 s37, s37, 6'); e('v_mov_b32 v10, s37')
            e('s_add_u32 s8, s4, 0x4100000'); e('s_addc_u32 s9, s5, 0'); e('s_mov_b32 s10, 0x100000')
            e('v_cmp_eq_u32 vcc, 0, v2'); e('s_and_saveexec_b64 s[62:63], vcc'); e('s_cbranch_execz K2_DONE')
            e('buffer_store_dwordx4 v[16:19], v10, s[8:11], 0 offen'); e('buffer_store_dwordx4 v[20:23], v10, s[8:11], 0 offen offset:16')
        e('s_endpgm')
        paths.append(['k2_pre', 'k2_loop', 'k2_loop', 'k2_mid', 'k2_w%d' % w])
    P.block('k2_end')
    e('K2_DONE:')
    e('s_endpgm')
    desc = '''.amdhsa_kernel %s
  .amdhsa_next_free_vgpr 512
  .amdhsa_next_free_sgpr 64
  .amdhsa_accum_offset 256
  .amdhsa_group_segment_fixed_size 0
  .amdhsa_kernarg_size 104
  .amdhsa_user_sgpr_count 2
  .amdhsa_user_sgpr_kernarg_segment_ptr 1
  .amdhsa_system_sgpr_workgroup_id_x 1
.end_amdhsa_kernel
''' % name
    return paths, desc
```

```python
from asmlib import *
WF_OFF = 0x2400000
XP_OFF = 0x3000000
NST = 16

def gen_k3(P, standalone=True, name='oproj_kernel'):
    e = P.e
    prof = getattr(P, 'prof', False)
    pol = P.opt.get('opol', 'sc1' if not standalone else '')
    def emit_groups(G):
        for g in G:
            for x in g:
                if isinstance(x, tuple): e(x[0], tag=x[1])
                else: e(x)
    P.block('k3_pre')
    if standalone:
        e('.p2align 8')
        e('.globl %s' % name)
        e('.type %s,@function' % name)
        e('%s:' % name)
        e('s_cmp_ge_u32 s2, 256')
        e('s_cbranch_scc1 K3_DONE')
        e('v_lshrrev_b32 v1, 6, v0')
        e('v_and_b32 v2, 63, v0')
        e('v_readfirstlane_b32 s32, v1')
        e('v_lshlrev_b32 v7, 4, v2')
        e('s_and_b32 s37, s2, 7')
        e('s_lshr_b32 s38, s2, 3')
        e('s_lshr_b32 s34, s37, 2')
        e('s_and_b32 s39, s37, 2')
        e('s_lshl_b32 s39, s39, 1')
        e('s_and_b32 s40, s38, 3')
        e('s_add_u32 s35, s39, s40')
        e('s_and_b32 s39, s37, 1')
        e('s_lshl_b32 s39, s39, 3')
        e('s_lshr_b32 s40, s38, 2')
        e('s_add_u32 s36, s39, s40')
    e('K3_START:')
    e('s_load_dwordx2 s[4:5], s[0:1], 96')
    e('s_load_dwordx2 s[6:7], s[0:1], 80')
    e('s_load_dwordx2 s[62:63], s[0:1], 88')
    e('s_lshr_b32 s41, s36, 3')
    e('s_lshr_b32 s42, s36, 1')
    e('s_and_b32 s42, s42, 3')
    e('s_and_b32 s43, s36, 1')
    e('s_lshr_b32 s44, s32, 1')
    e('s_and_b32 s45, s32, 1')
    e('s_lshl_b32 s46, s35, 1')
    e('s_add_u32 s46, s46, s41')
    e('s_lshl_b32 s47, s42, 1')
    e('s_add_u32 s47, s47, s45')
    e('s_waitcnt lgkmcnt(0)')
    if prof: e('s_memtime s[64:65]'); e('s_memrealtime s[72:73]'); e('s_waitcnt lgkmcnt(0)')
    e('s_lshl_b32 s37, s34, 4')
    e('s_add_u32 s37, s37, s46')
    e('s_lshl_b32 s37, s37, 7')
    e('s_lshl_b32 s38, s43, 6')
    e('s_add_u32 s37, s37, s38')
    e('s_mul_i32 s37, s37, 9216')
    e('s_add_u32 s8, s4, s37')
    e('s_addc_u32 s9, s5, 0')
    e('s_mov_b32 s10, %d' % (64 * 9216))
    e('s_mov_b32 s11, 0x00020000')
    e('s_lshl_b32 s37, s34, 3')
    e('s_add_u32 s37, s37, s47')
    e('s_lshl_b32 s37, s37, 7')
    e('s_add_u32 s37, s37, s38')
    e('s_mul_i32 s37, s37, 5120')
    e('s_add_u32 s37, s37, %d' % WF_OFF)
    e('s_add_u32 s12, s4, s37')
    e('s_addc_u32 s13, s5, 0')
    e('s_mov_b32 s14, %d' % (64 * 5120))
    e('s_mov_b32 s15, 0x00020000')
    e('s_mov_b32 s16, s6')
    e('s_mov_b32 s17, s7')
    e('s_mov_b32 s18, %d' % (8 * 288 * 1280 * 2))
    e('s_mov_b32 s19, 0x00020000')
    e('s_lshl_b32 s37, s34, 3')
    e('s_add_u32 s37, s37, s35')
    e('s_lshl_b32 s37, s37, 3')
    e('s_lshr_b32 s38, s36, 1')
    e('s_add_u32 s48, s37, s38')
    e('s_mul_i32 s37, s48, 94208')
    e('s_add_u32 s37, s37, %d' % XP_OFF)
    e('s_add_u32 s20, s4, s37')
    e('s_addc_u32 s21, s5, 0')
    e('s_mov_b32 s22, 94208')
    e('s_mov_b32 s23, 0x00020000')
    e('s_mov_b32 s28, s62')
    e('s_mov_b32 s29, s63')
    e('s_mov_b32 s30, 256')
    e('s_mov_b32 s31, 0x00020000')
    e('s_mul_i32 s49, s32, 9216')
    e('s_mov_b32 s50, s49')
    e('s_mul_i32 s52, s44, 5120')
    e('s_mul_i32 s37, s44, 9216')
    e('v_add_u32 v8, s37, v7')
    e('v_add_u32 v9, %d, v8' % (2 * 36864))
    blocks = ['k3_pre']
    if not standalone:
        P.block('k3_sync'); blocks.append('k3_sync')
        e('s_lshl_b32 s37, s34, 3')
        e('s_add_u32 s37, s37, s35')
        e('s_lshl_b32 s37, s37, 1')
        e('s_add_u32 s37, s37, s43')
        e('s_lshl_b32 s37, s37, 2')
        e('s_lshl_b32 s38, s34, 2')
        e('s_add_u32 s38, s38, 128')
        e('v_mov_b32 v10, s37')
        e('v_mov_b32 v11, s38')
        e('s_mov_b32 s39, 0x10000')
        e('K3_POLL:')
        e('buffer_load_dword v12, v10, s[28:31], 0 offen sc1')
        e('buffer_load_dword v13, v11, s[28:31], 0 offen sc1')
        e('s_waitcnt vmcnt(0)')
        e('v_readfirstlane_b32 s37, v12')
        e('v_readfirstlane_b32 s38, v13')
        e('s_cmp_eq_u32 s37, 8')
        e('s_cselect_b32 s37, 1, 0')
        e('s_cmp_eq_u32 s38, 128')
        e('s_cselect_b32 s38, 1, 0')
        e('s_and_b32 s37, s37, s38')
        e('s_cmp_eq_u32 s37, 1')
        e('s_cbranch_scc1 K3_GO')
        e('s_sub_u32 s39, s39, 1')
        e('s_cmp_eq_u32 s39, 0')
        e('s_cbranch_scc1 K3_GO')
        e('s_sleep 2')
        e('s_branch K3_POLL')
        e('K3_GO:')
        e('s_barrier')
    P.block('k3_pre2'); blocks.append('k3_pre2')
    def bdma(slot, tag):
        G = []
        for i in range(9):
            g = []
            if i % 4 == 0:
                g.append('s_add_u32 m0, s49, %d' % (slot * 36864 + i * 1024))
                if i: g.append('s_add_u32 s51, s50, %d' % (i * 1024))
            g.append(('buffer_load_dwordx4 v7, s[8:11], s%d offen offset:%d %s lds' % (51 if i >= 4 else 50, (i % 4) * 1024, pol), tag))
            G.append(g)
        G[-1].append('s_add_u32 s50, s50, 36864')
        return G
    ACC = 64
    def acc(t, qt):
        r = ACC + 4 * (t * 9 + qt); return 'v[%d:%d]' % (r, r + 3)
    def fA(b, t):
        r = b * 20 + 4 * t; return 'a[%d:%d]' % (r, r + 3)
    def fB(b, qt):
        r = 80 + b * 36 + 4 * qt; return 'a[%d:%d]' % (r, r + 3)
    def aload(b):
        L = []
        for t in range(4):
            L.append([('buffer_load_dwordx4 %s, v7, s[12:15], s52 offen offset:%d %s' % (fA(b, t), t * 1024, pol), 'a')])
        L.append(['s_add_u32 s53, s52, 4096', ('buffer_load_dwordx4 %s, v7, s[12:15], s53 offen %s' % (fA(b, 4), pol), 'a'), 's_add_u32 s52, s52, 10240'])
        return L
    def bread(slot, half, b):
        va = 'v8' if slot < 2 else 'v9'
        o = (slot % 2) * 36864 + half * 2 * 9216
        return ['ds_read_b128 %s, %s offset:%d' % (fB(b, qt), va, o + qt * 1024) for qt in range(9)]
    emit_groups(bdma(0, 'b0'))
    emit_groups(aload(0))
    emit_groups(bdma(1, 'b1'))
    emit_groups(aload(1))
    emit_groups(bdma(2, 'b2'))
    emit_groups(aload(2))
    emit_groups(bdma(3, 'b3'))
    P.waitvm(['b0'])
    e('s_barrier')
    for x in bread(0, 0, 0): e(x)
    if prof: e('s_memtime s[66:67]'); e('s_waitcnt lgkmcnt(0)')

    def kstep(j, first=False):
        s, half = (j // 2) % 4, j % 2
        fill = [[] for _ in range(45)]
        cap = [2] * 45
        def place(g, items, step=1):
            for x in items:
                while g < 44 and cap[g] <= 0: g += 1
                fill[g].append(x); cap[g] -= 1
                g += step - 1 if False else 0
            return g
        gb = 0
        if half == 1:
            fill[1].append(('BAR', (s + 1) % 4)); cap[1] -= 2; gb = 2
        nj = j + 1
        rd = bread((nj // 2) % 4, nj % 2, nj % 2)
        g = max(gb, 2)
        for x in rd:
            g = place(g, [x]); g += 2
        g = 4
        for grp in aload((j + 3) % 4):
            g = place(g, grp); g += 4
        if half == 1:
            g = 3
            for grp in bdma(s, 'b%d' % s):
                g = place(g, grp); g += 4
        gi = 0
        for t in range(5):
            for qt in range(9):
                a = acc(t, qt)
                e('v_mfma_f32_16x16x32_bf16 %s, %s, %s, %s' % (a, fA(j % 4, t), fB(j % 2, qt), '0' if first else a))
                for x in fill[gi]:
                    if isinstance(x, tuple) and x[0] == 'BAR':
                        P.waitvm(['b%d' % x[1]])
                        e('s_waitcnt lgkmcnt(0)')
                        e('s_barrier')
                    elif isinstance(x, tuple): e(x[0], tag=x[1])
                    else: e(x)
                gi += 1
    P.block('k3_first');
    kstep(0, first=True)
    for j in range(1, 8): kstep(j)
    e('s_mov_b32 s54, %d' % (NST // 4 - 1))
    P.block('k3_loop')
    e('K3_LOOP:')
    for j in range(8): kstep(j)
    e('s_sub_u32 s54, s54, 1')
    e('s_cmp_lg_u32 s54, 0')
    e('s_cbranch_scc1 K3_LOOP')
    P.block('k3_mid')
    if prof: e('s_memtime s[68:69]'); e('s_waitcnt lgkmcnt(0)')
    e('s_waitcnt vmcnt(0) lgkmcnt(0)')
    e('s_barrier')
    def owner(t, qt): return 0 if (qt <= 3 or (qt == 4 and t <= 1)) else 1
    own = {k: [(t, qt) for qt in range(9) for t in range(5) if owner(t, qt) == k] for k in range(2)}
    e('s_mul_i32 s37, s32, 23552')
    e('v_add_u32 v10, s37, v7')
    e('s_xor_b32 s38, s32, 2')
    e('s_mul_i32 s37, s38, 23552')
    e('v_add_u32 v11, s37, v7')
    e('v_and_b32 v4, 15, v2')
    e('v_lshrrev_b32 v5, 4, v2')
    e('s_mul_i32 s37, s46, 144')
    e('v_add_u32 v4, s37, v4')
    e('s_movk_i32 s38, 2560')
    e('v_mul_lo_u32 v4, v4, s38')
    e('s_mul_i32 s37, s34, 1280')
    e('s_mul_i32 s38, s47, 160')
    e('s_add_u32 s37, s37, s38')
    e('v_add_u32 v4, s37, v4')
    e('v_lshlrev_b32 v6, 4, v5')
    e('v_add_u32 v6, v4, v6')
    e('v_lshlrev_b32 v3, 3, v5')
    e('v_add_u32 v3, v4, v3')
    e('v_add_u32 v3, 128, v3')
    e('s_mul_i32 s55, s32, 23552')
    e('s_lshr_b32 s37, s48, 5')
    e('s_lshl_b32 s37, s37, 2')
    e('s_add_u32 s37, s37, 160')
    e('v_mov_b32 v12, s37')
    e('s_and_b32 s37, s48, 31')
    e('s_lshl_b32 s56, 1, s37')
    e('v_mov_b32 v13, s56')
    e('s_cmp_eq_u32 s44, 1')
    e('s_cbranch_scc1 K3_K1')
    paths = []
    for kk in range(2):
        P.block('k3_r%d' % kk)
        if kk: e('K3_K1:')
        for i, (t, qt) in enumerate(own[1 - kk]):
            e('ds_write_b128 v10, %s offset:%d' % (acc(t, qt), i * 1024))
        e('s_waitcnt lgkmcnt(0)')
        e('s_barrier')
        n = len(own[kk])
        def rd(i): e('ds_read_b128 v[%d:%d], v11 offset:%d' % (16 + 4 * (i % 12), 19 + 4 * (i % 12), i * 1024))
        for i in range(min(8, n)): rd(i)
        for i, (t, qt) in enumerate(own[kk]):
            r = ACC + 4 * (t * 9 + qt); b = 16 + 4 * (i % 12)
            for c in range(4): e('v_add_f32 v%d, v%d, v%d' % (r + c, r + c, b + c))
            if i + 8 < n: rd(i + 8)
        e('s_cmp_eq_u32 s43, 0')
        e('s_cbranch_scc1 K3_FIN%d' % kk)
        P.block('k3_s%d' % kk)
        for i, (t, qt) in enumerate(own[kk]):
            if i % 4 == 0: e('s_add_u32 s37, s55, %d' % (i * 1024))
            e('buffer_store_dwordx4 %s, v7, s[20:23], s37 offen offset:%d %s' % (acc(t, qt), (i % 4) * 1024, P.opt.get('xst', 'sc1')), tag='x')
        e('s_waitcnt vmcnt(0)')
        e('s_barrier')
        e('s_cmp_lg_u32 s32, 0')
        e('s_cbranch_scc1 K3_DONE')
        e('v_cmp_eq_u32 vcc, 0, v2')
        e('s_and_saveexec_b64 s[58:59], vcc')
        e('s_cbranch_execz K3_DONE')
        e('buffer_atomic_or v13, v12, s[28:31], 0 offen sc1')
        e('s_endpgm')
        P.block('k3_f%d' % kk)
        e('K3_FIN%d:' % kk)
        if prof: e('s_memtime s[76:77]'); e('s_waitcnt lgkmcnt(0)')
        e('s_mov_b32 s39, 0x10000')
        e('s_cmp_lg_u32 s32, 0')
        e('s_cbranch_scc1 K3_G2_%d' % kk)
        e('K3_P2_%d:' % kk)
        e('buffer_load_dword v14, v12, s[28:31], 0 offen sc1')
        e('s_waitcnt vmcnt(0)')
        e('v_readfirstlane_b32 s37, v14')
        e('s_and_b32 s37, s37, s56')
        e('s_cbranch_scc1 K3_G2_%d' % kk)
        e('s_sub_u32 s39, s39, 1')
        e('s_cmp_eq_u32 s39, 0')
        e('s_cbranch_scc1 K3_G2_%d' % kk)
        e('s_sleep %s' % P.opt.get('sleep', '4'))
        e('s_branch K3_P2_%d' % kk)
        e('K3_G2_%d:' % kk)
        e('s_barrier')
        P.block('k3_g%d' % kk)
        if prof: e('s_memtime s[78:79]'); e('s_waitcnt lgkmcnt(0)')
        for i in range(n):
            if i % 4 == 0: e('s_add_u32 s37, s55, %d' % (i * 1024))
            e('buffer_load_dwordx4 a[%d:%d], v7, s[20:23], s37 offen offset:%d sc1' % (4 * i, 4 * i + 3, (i % 4) * 1024))
        idx = {tl: i for i, tl in enumerate(own[kk])}
        def addp(t, qt):
            i = idx[(t, qt)]; r = ACC + 4 * (t * 9 + qt)
            for c in range(4): e('v_accvgpr_read_b32 v%d, a%d' % (16 + c, 4 * i + c))
            for c in range(4): e('v_add_f32 v%d, v%d, v%d' % (r + c, r + c, 16 + c))
            return r
        sb = 0
        for qt in range(9):
            for t0 in (0, 2):
                if (t0, qt) in idx:
                    r0 = addp(t0, qt); r1 = addp(t0 + 1, qt)
                    d = 24 + 4 * (sb % 4); sb += 1
                    e('v_cvt_pk_bf16_f32 v%d, v%d, v%d' % (d, r0, r0 + 1))
                    e('v_cvt_pk_bf16_f32 v%d, v%d, v%d' % (d + 1, r0 + 2, r0 + 3))
                    e('v_cvt_pk_bf16_f32 v%d, v%d, v%d' % (d + 2, r1, r1 + 1))
                    e('v_cvt_pk_bf16_f32 v%d, v%d, v%d' % (d + 3, r1 + 2, r1 + 3))
                    e('s_mov_b32 s37, %d' % (qt * 16 * 2560 + (t0 // 2) * 64))
                    e('buffer_store_dwordx4 v[%d:%d], v6, s[16:19], s37 offen' % (d, d + 3))
            if (4, qt) in idx:
                r0 = addp(4, qt)
                d = 40 + 2 * (sb % 4); sb += 1
                e('v_cvt_pk_bf16_f32 v%d, v%d, v%d' % (d, r0, r0 + 1))
                e('v_cvt_pk_bf16_f32 v%d, v%d, v%d' % (d + 1, r0 + 2, r0 + 3))
                e('s_mov_b32 s37, %d' % (qt * 16 * 2560))
                e('buffer_store_dwordx2 v[%d:%d], v3, s[16:19], s37 offen' % (d, d + 1))
        if prof:
            e('s_memtime s[70:71]'); e('s_memrealtime s[74:75]'); e('s_waitcnt lgkmcnt(0)')
            for i, sr in enumerate((64, 66, 68, 70, 72, 74, 76, 78)): e('v_mov_b32 v%d, s%d' % (16 + i, sr))
            e('s_lshl_b32 s37, s2, 2'); e('s_add_u32 s37, s37, s32'); e('s_lshl_b32 s37, s37, 6'); e('v_mov_b32 v10, s37')
            e('s_add_u32 s8, s4, 0x4100000'); e('s_addc_u32 s9, s5, 0'); e('s_mov_b32 s10, 0x100000')
            e('v_cmp_eq_u32 vcc, 0, v2'); e('s_and_saveexec_b64 s[58:59], vcc'); e('s_cbranch_execz K3_DONE')
            e('buffer_store_dwordx4 v[16:19], v10, s[8:11], 0 offen'); e('buffer_store_dwordx4 v[20:23], v10, s[8:11], 0 offen offset:16')
        e('s_endpgm')
        base = blocks + ['k3_first', 'k3_loop', 'k3_loop', 'k3_mid', 'k3_r%d' % kk]
        paths.append(base + ['k3_s%d' % kk]); paths.append(base + ['k3_f%d' % kk, 'k3_g%d' % kk])
    P.block('k3_end')
    e('K3_DONE:')
    e('s_endpgm')
    desc = '''.amdhsa_kernel %s
  .amdhsa_next_free_vgpr 512
  .amdhsa_next_free_sgpr 102
  .amdhsa_accum_offset 256
  .amdhsa_group_segment_fixed_size 0
  .amdhsa_kernarg_size 104
  .amdhsa_user_sgpr_count 2
  .amdhsa_user_sgpr_kernarg_segment_ptr 1
  .amdhsa_system_sgpr_workgroup_id_x 1
.end_amdhsa_kernel
''' % name
    return paths, desc
```

```python
from asmlib import *
from k1 import *
from k1b import *

def gen_emit(P, info, T):
    e = P.e
    fused = P.opt.get('fused', '1') == '1'
    spol = ' sc1' if fused else (' ' + P.opt.get('ostp', ''))
    slots, GB = T['slots'], T['GB']
    def valid(blk): return 0 <= blk[1] <= 15
    def emit_item_groups(g):
        for x in g:
            if isinstance(x, tuple): e(x[0], tag=x[1])
            else: e(x)
    def emit_range(G0, G1, zero_first=False, rawS0=False, skipv=None, skip_dma=False, skip_bar=False):
        for GG in range(G0, G1):
            s = slots[GG]; m = s['m']
            if valid(m['blk']):
                C = m['C']
                if zero_first and m['blk'] == ('F', 0) and m['ph'] == 4: C = '0'
                if rawS0 and m['ph'] == 1 and m['blk'] == ('F', 0) and m.get('ds') == 0: C = '0'
                e('v_mfma_f32_16x16x32_bf16 %s, %s, %s, %s' % (m['D'], m['A'], m['B'], C))
            for (t, blk) in s['l']:
                if valid(blk): e(t)
            for it in s['s']:
                if it[0] == 'BAR':
                    if skip_bar: continue
                    P.acc_begin()
                    P.waitvm(['p%d' % (it[1] % 4)])
                    e('s_barrier')
                    P.acc_end(1)
                    if P.opt.get('ist'):
                        e('s_memtime s[90:91]'); e('s_waitcnt lgkmcnt(0)')
                        e('s_mov_b32 s91, m0'); e('s_mov_b32 m0, s101'); e('v_writelane_b32 v1, s90, m0'); e('s_mov_b32 m0, s91'); e('s_add_u32 s101, s101, 1')
                elif it[0] == 'DMA':
                    if not skip_dma: emit_item_groups(it[1])
            for (t, blk) in s['v']:
                if valid(blk) and not (skipv and skipv(GG, t, blk)): e(t)
    P.cur = P.blocks['k1_asetup']
    c0 = []
    for GG in range(-NG + GB, GB):
        for it in slots[GG]['s']:
            if it[0] == 'DMA' and it[2] == 0: c0.append((GG, it[1]))
    assert len(c0) == 8, c0
    def emit_c0_early():
        for GG, g in c0:
            if GG < 0: emit_item_groups(g)
    emit_c0_early()

    P.stamp(3)
    P.block('k1_A')
    e('K1_A:')
    for GG in range(-NG + GB, 0):
        for (t, blk) in slots[GG]['l']:
            if blk == ('F', 0): e(t)
    deferred = []
    def skipv(GG, t, blk):
        if blk == ('F', 0) and GG < 40:
            deferred.append(t); return True
        return False
    emit_range(0, 40, rawS0=True, skipv=skipv)
    e('s_cmp_eq_u32 s%d, 1' % sGIVEN)
    e('s_cbranch_scc1 K1_AGIVEN')
    P.block('k1_Amax')
    R = range(5)
    def S(qt, i): return vSF + 8 * qt + i
    def N(qt, i): return vNM + 4 * qt + i
    for qt in R: e('v_max3_f32 v%d, v%d, v%d, v%d' % (N(qt, 0), S(qt, 0), S(qt, 1), S(qt, 2)))
    for qt in R: e('v_max3_f32 v%d, v%d, v%d, v%d' % (N(qt, 1), S(qt, 3), S(qt, 4), S(qt, 5)))
    for qt in R: e('v_max3_f32 v%d, v%d, v%d, v%d' % (N(qt, 0), N(qt, 0), S(qt, 6), S(qt, 7)))
    for qt in R: e('v_max_f32 v%d, v%d, v%d' % (N(qt, 0), N(qt, 0), N(qt, 1)))
    def xreduce_max():
        for sw in ('v_permlane32_swap_b32', 'v_permlane16_swap_b32'):
            for qt in R: e('v_mov_b32 v%d, v%d' % (N(qt, 1), N(qt, 0)))
            for qt in R: e('%s v%d, v%d' % (sw, N(qt, 0), N(qt, 1)))
            for qt in R: e('v_max_f32 v%d, v%d, v%d' % (N(qt, 0), N(qt, 0), N(qt, 1)))
        for qt in R: e('v_sub_f32 v%d, 0, v%d' % (N(qt, 0), N(qt, 0)))
        for i in range(1, 4):
            for qt in R: e('v_mov_b32 v%d, v%d' % (N(qt, i), N(qt, 0)))
    xreduce_max()
    P.block('k1_A2')
    e('K1_AGIVEN:')
    for i in range(8):
        for qt in R: e('v_add_f32 v%d, v%d, v%d' % (S(qt, i), N(qt, 0), S(qt, i)))
    for t in deferred: e(t)
    emit_range(40, GB, zero_first=True)
    P.block('k1_B')
    P.stamp(4)
    emit_range(GB, NG + GB, zero_first=True)
    e('s_mov_b32 s%d, 4' % sCNT)
    def text_of(G0, G1):
        save = P.cur; tmp = []; P.cur = tmp
        emit_range(G0, G1); P.cur = save
        return [i.text for i in tmp]
    for p in range(2, 12):
        assert text_of((p - 1) * NG + GB, p * NG + GB) == text_of((p + 3) * NG + GB, (p + 4) * NG + GB), p
    P.abl = P.opt.get('aabl', '').split(',')
    P.block('k1_L1')
    e('K1_L1:')
    emit_range(1 * NG + GB, 3 * NG + GB)
    e('s_sub_u32 s%d, s%d, 1' % (sCNT, sCNT))
    e('s_cmp_eq_u32 s%d, 0' % sCNT)
    e('s_cbranch_scc1 K1_T')
    P.block('k1_L2')
    emit_range(3 * NG + GB, 5 * NG + GB)
    e('s_branch K1_L1')
    P.abl = ()
    P.block('k1_T')
    e('K1_T:')
    P.stamp(5)
    emit_range(15 * NG + GB, 16 * NG)
    emit_range(16 * NG, 16 * NG + 76, skip_dma=True)
    assert all(GG < GB for GG, _ in c0)

    PK = vSF
    P.block('k1_E')
    P.stamp(6)
    e('s_mov_b64 s[62:63], 0')
    for qt in R:
        e('v_cmp_nlt_f32 vcc, v%d, v%d' % (vL + 4 * qt, 60)) if False else None
    e('v_mov_b32 v60, s%d' % sBIG)
    for qt in R:
        e('v_cmp_nlt_f32 vcc, v%d, v60' % (vL + 4 * qt))
        e('s_or_b64 s[62:63], s[62:63], vcc')
    e('s_cmp_lg_u64 s[62:63], 0')
    e('s_cselect_b32 s%d, 1, 0' % sT0)
    e('v_mov_b32 v61, s%d' % sT0)
    e('s_lshl_b32 s%d, s%d, 2' % (sT1, sW))
    e('s_add_u32 s%d, s%d, %d' % (sT1, sT1, XA + 16384))
    e('v_mov_b32 v62, s%d' % sT1)
    e('ds_write_b32 v62, v61')
    e('v_mov_b32 v60, v%d' % (vNM + 16))
    e('v_mov_b32 v61, v%d' % (vL + 16))
    e('s_lshl_b32 s%d, s%d, 9' % (sT1, sW))
    e('s_add_u32 s%d, s%d, %d' % (sT1, sT1, XA + 16384 + 256))
    e('v_lshlrev_b32 v62, 3, v2')
    e('v_add_u32 v62, s%d, v62' % sT1)
    e('ds_write_b64 v62, v[60:61]')
    e('s_xor_b32 s%d, s%d, 512' % (sT1, sT1))
    e('v_lshlrev_b32 v63, 3, v2')
    e('v_add_u32 v63, s%d, v63' % sT1)
    e('s_lshl_b32 s%d, s%d, 12' % (sT1, sW))
    e('s_add_u32 s%d, s%d, %d' % (sT1, sT1, XA))
    e('v_add_u32 v32, s%d, v7' % sT1)
    e('s_xor_b32 s%d, s%d, 4096' % (sT1, sT1))
    e('v_add_u32 v33, s%d, v7' % sT1)
    if fused and P.opt.get('sync') != 'all':
        e('s_lshl_b32 s%d, s%d, 3' % (sT1, sP))
        e('s_add_u32 s%d, s%d, s%d' % (sT1, sT1, sB))
        e('s_lshl_b32 s%d, s%d, 3' % (sT1, sT1))
        e('s_add_u32 s%d, s%d, 128' % (sT1, sT1))
        e('s_load_dwordx2 s[92:93], s[28:29], s%d' % sT1)
    e('s_cmp_eq_u32 s%d, 1' % sPAR)
    e('s_cbranch_scc1 K1_E1')
    names = []
    for par in range(2):
        P.block('k1_E%d' % par)
        if par: e('K1_E1:')
        keep = range(4 * par, 4 * par + 4); send = range(4 * (1 - par), 4 * (1 - par) + 4)
        for i, dt in enumerate(send):
            e('ds_write_b128 v32, %s offset:%d' % (O(4, dt), i * 1024))
        for qt in range(4):
            e('v_rcp_f32 v%d, v%d' % (vNM + 4 * qt + 2, vL + 4 * qt))
        tb = 0
        for qt in range(4):
            rr = vNM + 4 * qt + 2
            for u in range(4):
                t = vVR + 8 * (tb % 2); d = PK + 4 * (4 * qt + u); tb += 1
                for i in range(8):
                    e('v_accvgpr_read_b32 v%d, a%d' % (t + i, aO + 32 * qt + 8 * u + i))
                for i in range(0, 8, 2):
                    e('v_pk_mul_f32 v[%d:%d], v[%d:%d], v[%d:%d] op_sel_hi:[1,0]' % (t + i, t + i + 1, t + i, t + i + 1, rr, rr + 1))
                for i in range(4):
                    e('v_cvt_pk_bf16_f32 v%d, v%d, v%d' % (d + i, t + 2 * i, t + 2 * i + 1))
        if fused: P.waitvm(['wfst'])
        e('s_waitcnt lgkmcnt(0)')
        e('s_barrier')
        if fused and P.opt.get('sync') != 'all':
            e('s_lshl_b32 s%d, s%d, 2' % (sT0, sHEAD))
            e('s_add_u32 s%d, s%d, s%d' % (sT0, sT0, sW))
            e('s_add_u32 s%d, s%d, s%d' % (sT0, sT0, sGIVEN))
            e('s_cmp_lg_u32 s%d, 0' % sT0)
            e('s_cbranch_scc1 K1_NOW%d' % par)
            e('s_lshr_b32 s%d, s2, 7' % sT0)
            e('s_lshl_b32 s%d, s%d, 2' % (sT0, sT0))
            e('s_add_u32 s%d, s%d, 64' % (sT0, sT0))
            e('v_mov_b32 v60, s%d' % sT0)
            e('v_mov_b32 v61, 1')
            e('v_cmp_eq_u32 vcc, 0, v2')
            e('s_and_saveexec_b64 s[62:63], vcc')
            e('buffer_atomic_add v61, v60, %s, 0 offen sc1' % srd(S_WO))
            e('s_mov_b64 exec, s[62:63]')
            e('K1_NOW%d:' % par)
        pb = vL
        for i in range(4):
            e('ds_read_b128 %s, v33 offset:%d' % (vr(pb + 4 * i), i * 1024))
        e('ds_read_b64 v[60:61], v63')
        e('v_mov_b32 v62, %d' % (XA + 16384))
        e('ds_read_b128 %s, v62' % vr(vVR))
        e('v_or_b32 v%d, v%d, v%d' % (vVR, vVR, vVR + 1))
        e('v_or_b32 v%d, v%d, v%d' % (vVR + 2, vVR + 2, vVR + 3))
        e('v_or_b32 v%d, v%d, v%d' % (vVR, vVR, vVR + 2))
        e('v_readfirstlane_b32 s%d, v%d' % (sT0, vVR))
        e('s_andn2_b32 s%d, s%d, s%d' % (sT0, sT0, sGIVEN))
        e('s_cmp_lg_u32 s%d, 0' % sT0)
        e('s_cbranch_scc1 K1_FB')
        P.block('k1_F%d' % par)
        nmo = vNM + 16; lo = vL + 16
        e('v_min_f32 v62, v60, v%d' % nmo)
        e('v_sub_f32 v63, v62, v%d' % nmo)
        e('v_sub_f32 v62, v62, v60')
        e('v_exp_f32 v63, v63')
        e('v_exp_f32 v62, v62')
        e('v_mul_f32 v61, v61, v62')
        e('v_fma_f32 v61, v%d, v63, v61' % lo)
        e('v_rcp_f32 v61, v61')
        e('v_mul_f32 v63, v63, v61')
        e('v_mul_f32 v62, v62, v61')
        for uu in range(2):
            t = vVR + 8 * uu; d = PK + 64 + 4 * uu
            for i in range(8):
                e('v_accvgpr_read_b32 v%d, a%d' % (t + i, aO + 128 + 4 * keep[0] + 8 * uu + i))
            for i in range(8):
                e('v_mul_f32 v%d, v63, v%d' % (t + i, t + i))
            for i in range(8):
                e('v_fma_f32 v%d, v%d, v62, v%d' % (t + i, pb + 8 * uu + i, t + i))
            for i in range(4):
                e('v_cvt_pk_bf16_f32 v%d, v%d, v%d' % (d + i, t + 2 * i, t + 2 * i + 1))
        if par == 0: e('s_branch K1_N')
    P.block('k1_N')
    e('K1_N:')
    P.stamp(7)
    e('s_cmp_eq_u32 s%d, 1' % sHEAD)
    e('s_cbranch_scc1 K1_ST')
    P.block('k1_N2')
    e('s_mov_b32 s%d, 1' % sHEAD)
    if getattr(P, 'prof', False) and not P.opt.get('qst'):
        for i in range(4):
            e('s_mov_b64 s[%d:%d], s[%d:%d]' % (64 + 2 * (8 + i), 65 + 2 * (8 + i), 64 + 2 * (4 + i), 65 + 2 * (4 + i)))
    e('s_mov_b32 s%d, 0' % sGIVEN)
    e('s_add_u32 s%d, s%d, %d' % (sOFB, sOFB, 4 * 9216))
    for i in range(80):
        e('v_accvgpr_read_b32 v%d, a%d' % (vQ + i, aQN + i))
    for i in range(72):
        e('v_accvgpr_write_b32 a%d, v%d' % (aQN + i, PK + i))
    e('s_branch K1_A')
    P.block('k1_ST')
    e('K1_ST:')
    e('s_mul_i32 s%d, s%d, %d' % (sT3, sPAR, 2 * 9216))
    e('s_add_u32 s%d, s%d, s%d' % (sT3, sT3, sOT + 4))
    def final_stores(pol):
        for hd in (1, 0):
            if hd == 0: e('s_sub_u32 s%d, s%d, %d' % (sOFB, sOFB, 4 * 9216))
            for qt in range(5):
                e('s_add_u32 s%d, s%d, s%d' % (sT1, (sOT + qt) if qt < 4 else sT3, sOFB))
                for u in range(4 if qt < 4 else 2):
                    k = 4 * qt + u
                    src = vr(PK + 4 * k) if hd == 1 else ar(aQN + 4 * k)
                    if u: e('s_add_u32 s%d, s%d, 9216' % (sT1, sT1))
                    e('buffer_store_dwordx4 %s, v7, %s, s%d offen%s' % (src, srd(S_WS), sT1, pol), tag='ost')
    if fused and P.opt.get('sync') == 'all':
        final_stores(' sc1')
    elif fused:
        e('s_bcnt1_i32_b32 s%d, s92' % sT0)
        e('s_cmp_eq_u32 s%d, 1' % sT0)
        e('s_cselect_b32 s%d, 1, 0' % sT0)
        e('s_cmp_eq_u32 s93, 16')
        e('s_cselect_b32 s%d, 1, 0' % sT1)
        e('s_and_b32 s%d, s%d, s%d' % (sT0, sT0, sT1))
        if P.opt.get('forceslow'): e('s_mov_b32 s%d, 0' % sT0)
        e('s_cmp_eq_u32 s%d, 1' % sT0)
        e('s_cbranch_scc0 K1_STS')
        final_stores('')
        e('s_branch K1_FIN')
        P.block('k1_STS')
        e('K1_STS:')
        final_stores(' sc1')
    else:
        final_stores(spol)
    e('s_branch K1_FIN')

    P.block('k1_FB')
    e('K1_FB:')
    e('s_waitcnt vmcnt(0) lgkmcnt(0)')
    e('s_barrier')
    e('v_lshlrev_b32 v60, 8, v3')
    e('v_lshlrev_b32 v61, 4, v4')
    e('v_add_u32 v60, v60, v61')
    e('s_lshl_b32 s%d, s%d, 18' % (sT0, sHEAD))
    e('s_mov_b32 s%d, 64' % sCNT)
    for qt in R: e('v_mov_b32 v%d, 0xff800000' % N(qt, 0))
    P.block('k1_FBL')
    e('K1_FBL:')
    for ds in range(4):
        e('buffer_load_dwordx4 %s, v60, %s, s%d offen offset:%d' % (vr(vVR + 4 * ds), srd(S_K), sT0, ds * 64))
    for ds in range(4):
        for qt in R:
            D = vr(vSF + 8 * qt)
            e('v_mfma_f32_16x16x32_bf16 %s, %s, %s, %s' % (D, vr(vVR + 4 * ds), Qf(qt, ds), D if ds else '0'))
    for qt in R:
        e('v_max3_f32 v%d, v%d, v%d, v%d' % (N(qt, 0), N(qt, 0), S(qt, 0), S(qt, 1)))
    for qt in R:
        e('v_max3_f32 v%d, v%d, v%d, v%d' % (N(qt, 0), N(qt, 0), S(qt, 2), S(qt, 3)))
    e('s_add_u32 s%d, s%d, 4096' % (sT0, sT0))
    e('s_sub_u32 s%d, s%d, 1' % (sCNT, sCNT))
    e('s_cmp_lg_u32 s%d, 0' % sCNT)
    e('s_cbranch_scc1 K1_FBL')
    P.block('k1_FB2')
    xreduce_max()
    e('s_mov_b32 s%d, 1' % sGIVEN)
    e('s_lshl_b32 s%d, s%d, 18' % (sKO, sHEAD))
    e('s_lshl_b32 s%d, s%d, 18' % (sVO, sHEAD))
    for G in (kdma(0, 'p0'), vdma(0, 'p0'), kdma(1, 'p1'), vdma(1, 'p1')) + ((kdma(2, 'p2'),) if int(P.opt.get('kahead', 3)) == 3 else ()):
        for g in G: emit_item_groups(g)
    emit_c0_early()
    P.waitvm(['p0'])
    e('s_barrier')
    e('s_branch K1_A')
    P.block('k1_end')
    e('K1_FIN:')
    if fused:
        e('s_waitcnt vmcnt(0)')
        e('s_barrier')
        e('s_cmp_lg_u32 s%d, 0' % sW)
        e('s_cbranch_scc1 K1_NOC')
        e('s_lshl_b32 s%d, s%d, 3' % (sT0, sP))
        e('s_add_u32 s%d, s%d, s%d' % (sT0, sT0, sB))
        e('s_lshl_b32 s%d, s%d, 2' % (sT0, sT0))
        if P.opt.get('sync') == 'all': e('s_mov_b32 s%d, 0' % sT0)
        e('v_mov_b32 v60, s%d' % sT0)
        e('v_mov_b32 v61, 1')
        e('v_cmp_eq_u32 vcc, 0, v2')
        e('s_and_saveexec_b64 s[62:63], vcc')
        e('buffer_atomic_add v61, v60, %s, 0 offen sc1' % srd(S_WO))
        e('s_mov_b64 exec, s[62:63]')
        e('K1_NOC:')
    if getattr(P, 'prof', False):
        e('s_memrealtime s[98:99]')
        e('s_waitcnt lgkmcnt(0)')
        for i in range(16):
            src = (64 + 2 * i) if i < 12 else {12: 96, 13: 98, 14: 100, 15: 101}[i]
            e('v_mov_b32 v%d, s%d' % (64 + i, src))
        if P.opt.get('dbgout'):
            for i in range(1, 12): e('v_subrev_u32 v%d, s64, v%d' % (64 + i, 64 + i))
            e('v_subrev_u32 v77, s96, v77')
            e('s_load_dwordx2 s[8:9], s[0:1], 88')
            e('s_waitcnt lgkmcnt(0)')
            e('s_mov_b32 s10, 256')
            e('s_mov_b32 s11, 0x00020000')
            e('s_lshl_b32 s37, s2, 2')
            e('s_add_u32 s37, s37, s%d' % sW)
            e('s_cmp_lg_u32 s37, 400')
            e('s_cbranch_scc1 K1_DONE')
            e('v_mov_b32 v60, 0')
            e('v_cmp_eq_u32 vcc, 0, v2')
            e('s_and_saveexec_b64 s[62:63], vcc')
            for i in range(4):
                e('buffer_store_dwordx4 v[%d:%d], v60, s[8:11], 0 offen offset:%d' % (64 + 4 * i, 67 + 4 * i, 16 * i))
            e('s_endpgm')
        e('s_lshl_b32 s37, s2, 2')
        e('s_add_u32 s37, s37, s%d' % sW)
        if P.opt.get('ist'):
            e('s_lshl_b32 s38, s37, 8')
            e('v_lshlrev_b32 v61, 2, v2')
            e('v_add_u32 v61, s38, v61')
            e('s_add_u32 s8, s61, 0x4200000')
            e('s_addc_u32 s9, s55, 0')
            e('s_mov_b32 s10, 0x100000')
            e('s_mov_b32 s11, 0x00020000')
            e('buffer_store_dword v1, v61, s[8:11], 0 offen')
        e('s_lshl_b32 s37, s37, 6')
        e('v_mov_b32 v60, s37')
        e('s_add_u32 s8, s61, 0x4000000')
        e('s_addc_u32 s9, s55, 0')
        e('s_mov_b32 s10, 0x100000')
        e('s_mov_b32 s11, 0x00020000')
        e('v_cmp_eq_u32 vcc, 0, v2')
        e('s_and_saveexec_b64 s[62:63], vcc')
        e('s_cbranch_execz %s' % ('K1_PRE2' if fused else 'K1_DONE'))
        for i in range(4):
            e('buffer_store_dwordx4 v[%d:%d], v60, s[8:11], 0 offen offset:%d' % (64 + 4 * i, 67 + 4 * i, 16 * i))
    if fused:
        e('K1_PRE2:')
        e('s_mov_b64 exec, -1')
        e('s_branch K2_START')
    e('K1_DONE:')
    e('s_endpgm')

    pre = ['k1_pre', 'k1_q0', 'k1_qloop', 'k1_qloop', 'k1_qtail', 'k1_fx']
    paths = []
    for par in range(2):
        head = ['k1_A', 'k1_Amax', 'k1_A2', 'k1_B', 'k1_L1', 'k1_L2', 'k1_L1', 'k1_L2', 'k1_L1', 'k1_T', 'k1_E', 'k1_E%d' % par]
        paths.append(pre + ['k1_fx%d' % par, 'k1_asetup'] + head + ['k1_F%d' % par, 'k1_N', 'k1_N2'] + head + ['k1_F%d' % par, 'k1_N', 'k1_ST'] + (['k1_STS'] if (fused and P.opt.get('sync') != 'all') else []))
        paths.append(pre + ['k1_fx%d' % par, 'k1_asetup'] + head + ['k1_FB', 'k1_FBL', 'k1_FBL', 'k1_FB2', 'k1_A', 'k1_A2', 'k1_B', 'k1_L1', 'k1_T'])
    return paths
```

```python
from asmlib import *

WF_OFF = 0x2400000

def gen_k2(P, name='oproj_kernel', fused=False):
    P.block('k2_pre')
    e = P.e
    pol = 'sc1' if fused else P.opt.get('k2pol', '')
    if not fused:
        e('.p2align 8')
        e('.globl %s' % name)
        e('.type %s,@function' % name)
        e('%s:' % name)
        e('s_cmp_ge_u32 s2, 256')
        e('s_cbranch_scc1 K2_DONE')
    e('K2_START:')
    e('s_load_dwordx2 s[36:37], s[0:1], 88')
    e('s_load_dwordx2 s[4:5], s[0:1], 96')
    e('s_load_dwordx2 s[6:7], s[0:1], 80')
    e('v_lshrrev_b32 v1, 6, v0')
    e('v_and_b32 v2, 63, v0')
    e('v_readfirstlane_b32 s20, v1')
    e('v_lshlrev_b32 v3, 4, v2')
    e('s_and_b32 s21, s2, 7')
    e('s_lshr_b32 s22, s2, 3')
    e('s_lshr_b32 s23, s21, 2')
    if P.opt.get('map', 'local') == 'local':
        e('s_and_b32 s24, s21, 3')
        e('s_lshl_b32 s24, s24, 1')
        e('s_lshr_b32 s25, s22, 4')
        e('s_add_u32 s24, s24, s25')
        e('s_lshl_b32 s38, s23, 3')
        e('s_add_u32 s38, s38, s24')
        e('s_lshl_b32 s24, s24, 1')
        e('s_lshr_b32 s25, s22, 3')
        e('s_and_b32 s25, s25, 1')
        e('s_add_u32 s24, s24, s25')
        e('s_and_b32 s25, s22, 7')
    else:
        e('s_and_b32 s24, s21, 2')
        e('s_lshl_b32 s24, s24, 1')
        e('s_and_b32 s25, s22, 3')
        e('s_add_u32 s24, s24, s25')
        e('s_lshl_b32 s38, s23, 3')
        e('s_add_u32 s38, s38, s24')
        e('s_lshl_b32 s24, s24, 1')
        e('s_and_b32 s25, s21, 1')
        e('s_add_u32 s24, s24, s25')
        e('s_lshr_b32 s25, s22, 2')
    e('s_waitcnt lgkmcnt(0)')
    e('s_lshl_b32 s26, s23, 4')
    e('s_add_u32 s26, s26, s24')
    e('s_mul_i32 s26, s26, %d' % (128 * 9216))
    e('s_add_u32 s8, s4, s26')
    e('s_addc_u32 s9, s5, 0')
    e('s_mov_b32 s10, %d' % (128 * 9216))
    e('s_mov_b32 s11, 0x00020000')
    e('s_lshl_b32 s26, s23, 3')
    e('s_add_u32 s26, s26, s25')
    e('s_mul_i32 s26, s26, %d' % (128 * 5120))
    e('s_add_u32 s26, s26, %d' % WF_OFF)
    e('s_add_u32 s12, s4, s26')
    e('s_addc_u32 s13, s5, 0')
    e('s_mov_b32 s14, %d' % (128 * 5120))
    e('s_mov_b32 s15, 0x00020000')
    e('s_mov_b32 s16, s6')
    e('s_mov_b32 s17, s7')
    e('s_mov_b32 s18, %d' % (8 * 288 * 1280 * 2))
    e('s_mov_b32 s19, 0x00020000')
    if getattr(P,'prof',False): e('s_memtime s[52:53]'); e('s_memrealtime s[48:49]'); e('s_waitcnt lgkmcnt(0)')
    if fused:
        e('s_mov_b32 s40, s36')
        e('s_mov_b32 s41, s37')
        e('s_mov_b32 s42, 256')
        e('s_mov_b32 s43, 0x00020000')
        e('s_lshl_b32 s38, s38, 2')
        e('s_lshl_b32 s39, s23, 2')
        e('s_add_u32 s39, s39, 64')
        e('v_mov_b32 v10, s38')
        e('v_mov_b32 v11, s39')
        e('s_mov_b32 s39, 0x10000')
        e('s_cmp_lg_u32 s20, 0')
        e('s_cbranch_scc1 K2_GO')
        e('K2_POLL:')
        if P.opt.get('sync') == 'all':
            e('v_mov_b32 v10, 0')
            e('buffer_load_dword v12, v10, s[40:43], 0 offen sc1')
            e('s_waitcnt vmcnt(0)')
            e('v_readfirstlane_b32 s37, v12')
            e('s_cmp_eq_u32 s37, 256')
            e('s_cbranch_scc1 K2_GO')
        else:
            e('buffer_load_dword v12, v10, s[40:43], 0 offen sc1')
            e('buffer_load_dword v13, v11, s[40:43], 0 offen sc1')
            e('s_waitcnt vmcnt(0)')
            e('v_readfirstlane_b32 s37, v12')
            e('v_readfirstlane_b32 s38, v13')
            e('s_cmp_eq_u32 s37, 16')
            e('s_cselect_b32 s37, 1, 0')
            e('s_cmp_eq_u32 s38, 128')
            e('s_cselect_b32 s38, 1, 0')
            e('s_and_b32 s37, s37, s38')
            e('s_cmp_eq_u32 s37, 1')
            e('s_cbranch_scc1 K2_GO')
        e('s_sub_u32 s39, s39, 1')
        e('s_cmp_eq_u32 s39, 0')
        e('s_cbranch_scc1 K2_GO')
        e('s_sleep %s' % P.opt.get('sleep', '16'))
        e('s_branch K2_POLL')
        e('K2_GO:')
        e('s_barrier')
    kq = P.opt.get('k2q') == '1'
    e('s_mul_i32 s30, s20, %d' % (9216 * (32 if kq else 1)))
    e('s_mul_i32 s31, s20, %d' % (5120 * (32 if kq else 1)))
    ACC = 64
    def acc(t, qt):
        r = ACC + 4 * (t * 9 + qt); return 'v[%d:%d]' % (r, r + 3)
    def fA(st, t):
        r = st * 56 + 4 * t; return 'a[%d:%d]' % (r, r + 3)
    def fB(st, qt):
        r = st * 56 + 20 + 4 * qt; return 'a[%d:%d]' % (r, r + 3)
    def loads(st):
        L = []
        L.append(['buffer_load_dwordx4 %s, v3, s[12:15], s31 offen %s' % (fA(st, 0), pol)])
        L.append(['s_add_u32 s32, s30, 4096', 's_add_u32 s33, s30, 8192', 'buffer_load_dwordx4 %s, v3, s[8:11], s30 offen %s' % (fB(st, 0), pol)])
        for qt in range(1, 4):
            L.append(['buffer_load_dwordx4 %s, v3, s[8:11], s30 offen offset:%d %s' % (fB(st, qt), qt * 1024, pol)])
        for qt in range(4, 8):
            L.append(['buffer_load_dwordx4 %s, v3, s[8:11], s32 offen offset:%d %s' % (fB(st, qt), (qt - 4) * 1024, pol)])
        L.append(['buffer_load_dwordx4 %s, v3, s[8:11], s33 offen %s' % (fB(st, 8), pol)])
        for t in range(1, 4):
            L.append(['buffer_load_dwordx4 %s, v3, s[12:15], s31 offen offset:%d %s' % (fA(st, t), t * 1024, pol)])
        L.append(['s_add_u32 s34, s31, 4096', 'buffer_load_dwordx4 %s, v3, s[12:15], s34 offen %s' % (fA(st, 4), pol),
                  's_add_u32 s30, s30, %d' % ((1 if kq else 4) * 9216), 's_add_u32 s31, s31, %d' % ((1 if kq else 4) * 5120)])
        return L
    for st in range(3):
        for grp in loads(st):
            for t in grp: e(t)
    for r in range(ACC, ACC + 180):
        e('v_mov_b32 v%d, 0' % r)
    e('s_mov_b32 s35, 8')
    if getattr(P,'prof',False): e('s_memtime s[54:55]'); e('s_waitcnt lgkmcnt(0)')
    P.block('k2_loop')
    e('K2_LOOP:')
    for st in range(4):
        L = loads((st + 3) % 4)
        g = 0; li = 0
        for t in range(5):
            for qt in range(9):
                e('v_mfma_f32_16x16x32_bf16 %s, %s, %s, %s' % (acc(t, qt), fA(st, t), fB(st, qt), acc(t, qt)))
                if g % 3 == 1 and li < len(L):
                    for x in L[li]: e(x)
                    li += 1
                g += 1
        assert li == len(L)
    e('s_sub_u32 s35, s35, 1')
    e('s_cmp_lg_u32 s35, 0')
    e('s_cbranch_scc1 K2_LOOP')
    P.block('k2_mid')
    if getattr(P,'prof',False): e('s_memtime s[56:57]'); e('s_waitcnt lgkmcnt(0)')
    e('s_waitcnt vmcnt(0)')
    units = {0: [('P', 0, q) for q in range(0, 5)] + [('S', 4, 0)],
             1: [('P', 0, q) for q in range(5, 9)] + [('P', 2, 0)] + [('S', 4, 1)],
             2: [('P', 2, q) for q in range(1, 5)] + [('S', 4, q) for q in (2, 3, 4)],
             3: [('P', 2, q) for q in range(5, 9)] + [('S', 4, q) for q in (5, 6, 7, 8)]}
    owner = {}
    for w, us in units.items():
        for (k, t, q) in us:
            owner[(t, q)] = w
            if k == 'P': owner[(t + 1, q)] = w
    assert len(owner) == 45
    e('v_and_b32 v4, 15, v2')
    e('v_lshrrev_b32 v5, 4, v2')
    e('s_mul_i32 s26, s24, 144')
    e('v_add_u32 v4, s26, v4')
    e('s_movk_i32 s27, 2560')
    e('v_mul_lo_u32 v4, v4, s27')
    e('s_mul_i32 s26, s23, 1280')
    e('s_mul_i32 s27, s25, 160')
    e('s_add_u32 s26, s26, s27')
    e('v_add_u32 v4, s26, v4')
    e('v_lshlrev_b32 v6, 4, v5')
    e('v_add_u32 v6, v4, v6')
    e('v_lshlrev_b32 v7, 3, v5')
    e('v_add_u32 v7, v4, v7')
    e('v_add_u32 v7, 128, v7')
    e('v_add_u32 v8, 0x10000, v3')
    e('v_add_u32 v9, 0x20000, v3')
    for w in range(1, 4):
        e('s_cmp_eq_u32 s20, %d' % w)
        e('s_cbranch_scc1 K2_W%d' % w)
    paths = []
    def ldsaddr(off):
        if off < 0x10000: return 'v3', off
        if off < 0x20000: return 'v8', off - 0x10000
        return 'v9', off - 0x20000
    for w in range(4):
        P.block('k2_w%d' % w)
        e('K2_W%d:' % w)
        for t in range(5):
            for qt in range(9):
                o = owner[(t, qt)]
                if o == w: continue
                idx = w if w < o else w - 1
                a, off = ldsaddr(((t * 9 + qt) * 3 + idx) * 1024)
                e('ds_write_b128 %s, %s offset:%d' % (a, acc(t, qt), off))
        e('s_waitcnt lgkmcnt(0)')
        e('s_barrier')
        tmp = 16
        slot = 0
        def sum_tile(t, qt):
            nonlocal slot
            base = tmp + 12 * (slot % 4); slot += 1
            for idx in range(3):
                a, off = ldsaddr(((t * 9 + qt) * 3 + idx) * 1024)
                e('ds_read_b128 v[%d:%d], %s offset:%d' % (base + 4 * idx, base + 4 * idx + 3, a, off))
            return base
        tiles = []
        for (k, t, q) in units[w]:
            tiles.append((k, t, q))
        pend = []
        def issue(u):
            k, t, q = u
            b0 = sum_tile(t, q)
            b1 = sum_tile(t + 1, q) if k == 'P' else None
            return (u, b0, b1)
        def finish(pu):
            (k, t, q), b0, b1 = pu
            for (tt, b) in ((t, b0), (t + 1, b1)):
                if b is None: continue
                r = ACC + 4 * (tt * 9 + q)
                for i in range(4):
                    e('v_add_f32 v%d, v%d, v%d' % (b + i, b + i, b + 4 + i))
                    e('v_add_f32 v%d, v%d, v%d' % (r + i, r + i, b + 8 + i))
                for i in range(4):
                    e('v_add_f32 v%d, v%d, v%d' % (r + i, r + i, b + i))
            r0 = ACC + 4 * (t * 9 + q)
            if k == 'P':
                r1 = ACC + 4 * ((t + 1) * 9 + q)
                e('v_cvt_pk_bf16_f32 v10, v%d, v%d' % (r0, r0 + 1))
                e('v_cvt_pk_bf16_f32 v11, v%d, v%d' % (r0 + 2, r0 + 3))
                e('v_cvt_pk_bf16_f32 v12, v%d, v%d' % (r1, r1 + 1))
                e('v_cvt_pk_bf16_f32 v13, v%d, v%d' % (r1 + 2, r1 + 3))
                e('s_mov_b32 s26, %d' % (q * 16 * 2560 + (t // 2) * 64))
                e('buffer_store_dwordx4 v[10:13], v6, s[16:19], s26 offen')
            else:
                e('v_cvt_pk_bf16_f32 v14, v%d, v%d' % (r0, r0 + 1))
                e('v_cvt_pk_bf16_f32 v15, v%d, v%d' % (r0 + 2, r0 + 3))
                e('s_mov_b32 s26, %d' % (q * 16 * 2560))
                e('buffer_store_dwordx2 v[14:15], v7, s[16:19], s26 offen')
        prev = None
        for u in tiles:
            cur = issue(u)
            if prev is not None: finish(prev)
            prev = cur
        finish(prev)
        if getattr(P,'prof',False):
            e('s_memtime s[58:59]'); e('s_memrealtime s[50:51]'); e('s_waitcnt lgkmcnt(0)')
            for i, sr in enumerate((52, 54, 56, 58, 48, 50)): e('v_mov_b32 v%d, s%d' % (16 + i, sr))
            e('s_lshl_b32 s37, s2, 2'); e('s_add_u32 s37, s37, s20'); e('s_lshl_b32 s37, s37, 6'); e('v_mov_b32 v10, s37')
            e('s_add_u32 s8, s4, 0x4100000'); e('s_addc_u32 s9, s5, 0'); e('s_mov_b32 s10, 0x100000')
            e('v_cmp_eq_u32 vcc, 0, v2'); e('s_and_saveexec_b64 s[62:63], vcc'); e('s_cbranch_execz K2_DONE')
            e('buffer_store_dwordx4 v[16:19], v10, s[8:11], 0 offen'); e('buffer_store_dwordx4 v[20:23], v10, s[8:11], 0 offen offset:16')
        e('s_branch K2_DONE' if P.opt.get('dbg2') else 's_endpgm')
        paths.append(['k2_pre', 'k2_loop', 'k2_loop', 'k2_mid', 'k2_w%d' % w])
    P.block('k2_end')
    e('K2_DONE:')
    if P.opt.get('dbg2'):
        e('s_cmp_lg_u32 s2, 0')
        e('s_cbranch_scc1 K2_D2')
        e('s_cmp_lg_u32 s20, 3')
        e('s_cbranch_scc1 K2_D2')
        e('s_mov_b64 exec, -1')
        e('s_add_u32 s8, s4, %d' % (0x4000000 + 400 * 64))
        e('s_addc_u32 s9, s5, 0')
        e('s_mov_b32 s10, 64')
        e('s_mov_b32 s11, 0x00020000')
        e('v_lshlrev_b32 v10, 2, v2')
        e('buffer_load_dword v11, v10, s[8:11], 0 offen')
        e('s_waitcnt vmcnt(0)')
        e('v_readfirstlane_b32 s37, v11')
        e('v_subrev_u32 v11, s37, v11')
        e('s_mov_b32 s8, s36')
        e('s_mov_b32 s9, s37')
        e('s_load_dwordx2 s[8:9], s[0:1], 88')
        e('s_waitcnt lgkmcnt(0)')
        e('buffer_store_dword v11, v10, s[8:11], 0 offen')
        e('K2_D2:')
    e('s_endpgm')
    desc = '''.amdhsa_kernel %s
  .amdhsa_next_free_vgpr 512
  .amdhsa_next_free_sgpr 64
  .amdhsa_accum_offset 256
  .amdhsa_group_segment_fixed_size 0
  .amdhsa_kernarg_size 104
  .amdhsa_user_sgpr_count 2
  .amdhsa_user_sgpr_kernarg_segment_ptr 1
  .amdhsa_system_sgpr_workgroup_id_x 1
.end_amdhsa_kernel
''' % name
    return paths, desc
```
